```python
import torch

def _softmax(x, axis=-1):
    return torch.softmax(x, dim=axis)
def _gelu(x):
    return torch.nn.functional.gelu(x, approximate="tanh")
def _silu(x):
    return torch.nn.functional.silu(x)
def _sigmoid(x):
    return torch.sigmoid(x)
def _layernorm(x, axis=-1, eps=1e-5):
    m = x.mean(dim=axis, keepdim=True)
    v = x.var(dim=axis, keepdim=True, unbiased=False)
    return (x - m) / torch.sqrt(v + eps)
def _scatter_add(tgt, idx, src, axis=0):
    return tgt.clone().index_add_(axis, idx, src)
def _segment_sum(src, seg, n):
    out = torch.zeros((n,) + src.shape[1:], dtype=src.dtype)
    return out.index_add_(0, seg, src)
def _pad(x, pw):
    flat = tuple(v for pair in reversed(pw) for v in pair)
    return torch.nn.functional.pad(x, flat)

kernel_name = 'standalone__paged_block_table_kv_radixattention__decode'

def setup_inputs():

    _w = (lambda a: (lambda t: t.to(torch.bfloat16) if t.is_floating_point() else t)(torch.as_tensor(a)))
    B, H, Hkv, Dh = 4, 32, 8, 128
    Lk = 16384
    bs = 16
    nb = max(2, Lk // bs)
    P = max(1, nb // 2)
    n_phys = P + B * (nb - P)
    shared = torch.arange(P, dtype=torch.int64)
    priv = P + torch.arange(B * (nb - P), dtype=torch.int64).reshape(B, nb - P)
    bt = torch.cat([torch.tile(shared[None, :], (B, 1)), priv], dim=1)
    ctx = nb * bs - (torch.arange(1, B + 1, dtype=torch.int64) * 2654435761) % max(1, (nb * bs - P * bs) // 2)
    return {
        "q": _w((lambda *s: torch.randn(*s, dtype=torch.bfloat16) * 0.8)(B, H, Dh)),
        "k_cache": _w((lambda *s: torch.randn(*s, dtype=torch.bfloat16) * 0.8)(n_phys, bs, Hkv, Dh)),
        "v_cache": _w((lambda *s: torch.randn(*s, dtype=torch.bfloat16) * 0.05)(n_phys, bs, Hkv, Dh)),
        "block_table": _w(bt.to(torch.int64)),
        "ctx_lens": _w(torch.as_tensor(ctx).to(torch.int64)),
    }

def reference(q, k_cache, v_cache, block_table, ctx_lens):
    B, H, Dh = q.shape
    n_phys, bs, Hkv, _ = k_cache.shape
    nb = block_table.shape[1]
    Lk = nb * bs
    rep = H // Hkv
    k = k_cache[block_table].reshape(B, Lk, Hkv, Dh)
    v = v_cache[block_table].reshape(B, Lk, Hkv, Dh)
    k = (lambda x, n, axis: torch.repeat_interleave(x, n, dim=axis))(k, rep, axis=2)
    v = (lambda x, n, axis: torch.repeat_interleave(x, n, dim=axis))(v, rep, axis=2)
    scores = torch.einsum("bhd,bkhd->bhk", q, k) * (Dh ** -0.5)
    pos = torch.arange(Lk)
    valid = pos[None, :] < ctx_lens[:, None]
    scores = torch.where(valid[:, None, :], scores, -1e9)
    p = _softmax(scores, axis=-1)
    return torch.einsum("bhk,bkhd->bhd", p, v)
```

```python
import re

TRANS = ("v_exp_f32", "v_log_f32", "v_rcp_f32", "v_rsq_f32", "v_sqrt_f32", "v_sin_f32", "v_cos_f32", "v_rcp_iflag_f32")

def parse_reg(tok):
    tok = tok.strip()
    neg = tok.lstrip('-')
    m = re.fullmatch(r'(?:abs\()?([vsa])(\d+)\)?', neg)
    if m:
        return [(m.group(1), int(m.group(2)))]
    m = re.fullmatch(r'([vsa])\[(\d+):(\d+)\]', neg)
    if m:
        return [(m.group(1), i) for i in range(int(m.group(2)), int(m.group(3)) + 1)]
    if neg == 'vcc':
        return [('x', 'vcc')]
    if neg in ('vcc_lo', 'vcc_hi'):
        return [('x', 'vcc')]
    if neg == 'exec' or neg in ('exec_lo', 'exec_hi'):
        return [('x', 'exec')]
    if neg == 'm0':
        return [('x', 'm0')]
    return []

class Ins:
    def __init__(self, text):
        self.text = text
        t = text.split(';')[0].strip()
        self.label = t.endswith(':')
        self.directive = t.startswith('.')
        self.empty = (t == '')
        self.op = ''
        self.rd = []; self.wr = []
        self.cls = 'other'
        self.a = self.b = self.c = []
        self.dpp = False
        self.ws = 1
        if self.label or self.directive or self.empty:
            self.ws = 0
            return
        parts = t.split(None, 1)
        self.op = op = parts[0]
        rest = parts[1] if len(parts) > 1 else ''
        ops = [o.strip() for o in rest.split(',')] if rest else []
        mods = ''
        if ops:
            last = ops[-1].split(None, 1)
            ops[-1] = last[0]
            mods = last[1] if len(last) > 1 else ''
        self.mods = mods
        R = [parse_reg(o) for o in ops]
        flat = lambda L: [x for l in L for x in l]
        if op == 's_nop':
            self.ws = int(ops[0], 0) + 1; self.cls = 'nop'
        elif op.startswith('v_mfma'):
            self.cls = 'mfma'; self.wr = R[0]; self.a = R[1]; self.b = R[2]; self.c = R[3]
            self.rd = flat(R[1:])
        elif op.startswith('v_'):
            self.cls = 'valu'
            self.dpp = ('_dpp' in op) or ('row_' in mods) or ('quad_perm' in mods)
            if 'permlane' in op and 'swap' in op:
                self.wr = flat(R[:2]); self.rd = flat(R[:2]); self.cls = 'valu'; self.permlane = True
            elif op.startswith('v_fmac') or op.startswith('v_pk_fmac') or self.dpp:
                self.wr = R[0]; self.rd = flat(R)
            elif op.startswith('v_add_co') or op.startswith('v_sub_co') or op.startswith('v_addc_co'):
                self.wr = flat(R[:2]); self.rd = flat(R[2:])
            elif op.startswith('v_writelane'):
                self.wr = R[0]; self.rd = flat(R)
            else:
                self.wr = R[0]; self.rd = flat(R[1:])
        elif op.startswith('buffer_') or op.startswith('global_'):
            self.cls = 'vmem'
            if 'load' in op and re.search(r'\blds\b', mods):
                self.rd = flat(R) + [('x', 'm0')]; self.ldsdma = True
            elif 'load' in op:
                self.wr = R[0]; self.rd = flat(R[1:])
            elif 'atomic' in op:
                self.rd = flat(R)
                if 'sc0' in mods: self.wr = R[0]
            elif 'store' in op:
                self.rd = flat(R)
                if 'x4' in op or 'x3' in op:
                    self.wide_store = R[0] if op.startswith('buffer_') else R[1]
            else:
                pass
        elif op.startswith('ds_'):
            self.cls = 'ds'
            if 'read' in op or 'bpermute' in op or 'swizzle' in op or '_rtn' in op:
                self.wr = R[0]; self.rd = flat(R[1:])
            else:
                self.rd = flat(R)
        elif op.startswith('s_'):
            self.cls = 'salu'
            if op.startswith('s_cmp') or op.startswith('s_bitcmp') or op in ('s_waitcnt', 's_barrier', 's_endpgm', 's_sleep', 's_setprio', 's_branch') or op.startswith('s_cbranch'):
                self.rd = flat(R)
            elif op.startswith('s_bitset'):
                self.wr = R[0]; self.rd = flat(R)
            elif 'saveexec' in op:
                self.wr = R[0] + [('x', 'exec')]; self.rd = flat(R[1:]) + [('x', 'exec')]
            else:
                self.wr = R[0] if R else []; self.rd = flat(R[1:])
        self.trans = op.replace('_e32', '').replace('_e64', '') in TRANS
        self.rdlane = op.startswith('v_readlane') or op.startswith('v_readfirstlane')
        self.lanesel = R[2] if op.startswith('v_readlane') or op.startswith('v_writelane') else []

def need(prod, cons):
    n = 0
    pw = set(prod.wr)
    cr = set(cons.rd); cw = set(cons.wr)
    if prod.cls == 'valu':
        vw = {r for r in pw if r[0] in 'va'}
        sw = {r for r in pw if r[0] == 's' or r == ('x', 'vcc')}
        if vw:
            if cons.cls == 'mfma' and vw & cr: n = max(n, 2)
            if cons.cls == 'valu':
                if getattr(cons, 'permlane', False) and vw & cr: n = max(n, 2)
                if cons.dpp and vw & cr: n = max(n, 2)
                if cons.rdlane and vw & cr: n = max(n, 1)
            if prod.trans and (vw & cr) and cons.cls in ('valu', 'vmem', 'ds'): n = max(n, 1)
        if sw:
            if cons.cls == 'valu' and sw & cr:
                n = max(n, 2)
                if sw & set(cons.lanesel): n = max(n, 4)
            if cons.cls == 'vmem' and sw & cr: n = max(n, 5)
            if cons.cls == 'salu' and sw & cr: n = max(n, 1)
        if ('x', 'exec') in pw:
            n = max(n, 5)
    if prod.cls == 'mfma':
        d = pw
        if cons.cls == 'mfma':
            if d & (set(cons.a) | set(cons.b)): n = max(n, 8)
            if d & set(cons.c):
                if list(cons.c) != list(prod.wr): n = max(n, 6)
            if d & cw and not (d & set(cons.c)): n = max(n, 8)
        elif cons.cls in ('valu', 'vmem', 'ds'):
            if d & (cr | cw): n = max(n, 8)
        if cons.cls == 'valu' and set(prod.c) & cw: n = max(n, 3)
    if prod.cls == 'salu' and ('x', 'm0') in pw and getattr(cons, 'ldsdma', False):
        n = max(n, 1)
    ws = getattr(prod, 'wide_store', None)
    if ws and set(ws) & cw:
        n = max(n, 2 if cons.cls == 'valu' else 1)
    return n

class Asm:
    def __init__(self):
        self.lines = []
    def __call__(self, text):
        for l in text.split('\n'):
            l = l.strip()
            if l:
                self.lines.append(l)
    def finalize(self):
        out = []
        hist = []
        nins = 0
        for l in self.lines:
            ins = Ins(l)
            if ins.ws == 0:
                out.append(l); continue
            dist = 0; req = 0
            for p in reversed(hist):
                if dist >= 12: break
                r = need(p, ins) - dist
                req = max(req, r)
                dist += p.ws
            if req > 0:
                nop = Ins('s_nop %d' % (req - 1))
                out.append('  ' + nop.text + '   ; auto')
                hist.append(nop); nins += 1
            out.append('  ' + l)
            hist.append(ins)
            hist = hist[-16:]
        return '\n'.join(out) + '\n', nins

class Regs:
    def __init__(self, kind, start, limit):
        self.kind = kind; self.next = start; self.limit = limit; self.hi = start
    def alloc(self, n=1, align=1):
        s = (self.next + align - 1) // align * align
        self.next = s + n
        assert self.next <= self.limit, "out of %s regs" % self.kind
        self.hi = max(self.hi, self.next)
        return s
    def one(self):
        return '%s%d' % (self.kind, self.alloc(1))
    def rng(self, n, align=None):
        if align is None: align = 2 if self.kind == 'v' else (4 if n >= 4 else 2)
        return self.alloc(n, align)

def vr(base, n=1):
    return 'v%d' % base if n == 1 else 'v[%d:%d]' % (base, base + n - 1)
def sr(base, n=1):
    return 's%d' % base if n == 1 else 's[%d:%d]' % (base, base + n - 1)
```

```python
import sys, struct, math
from asmfw import *

NAME = "standalone__paged_block_table_kv_radixattention__decode"
KV_BYTES = 2560 * 32768
WS_BYTES = 335544320
ML_BASE = 4 << 20
STAMP_BASE = 8 << 20
def f2u(x): return struct.unpack('<I', struct.pack('<f', x))[0]
CSC = f2u(128 ** -0.5 * math.log2(math.e))
MASKV = 0xD3800000
NEGBIG = 0xFE800000
TBL = 131072
MINS = 147456
FLAG = MINS + 64
LDS_BYTES = MINS + 128

def gen(stamps=False, ntk='nt', ntv='nt'):
    A = Asm()
    V = Regs('v', 1, 256)
    S = Regs('s', 52, 100)
    pQ, pK, pV, pBT, pCTX, pOUT, pDBG, pWS = 4, 6, 8, 10, 12, 14, 16, 18
    srdK, srdV, srdQ, srdBT, srdWS, srdOUT, srdDBG = 20, 24, 28, 32, 36, 40, 44
    sCtx = 48
    sW, sHp, sSlot, sHl, sPart, sHead = [S.one() for _ in range(6)]
    sC = S.one(); sSelLo = S.one(); sSelHi = S.one()
    sN = S.one(); sI0 = S.one(); sKb = S.one()
    sE = [S.one() for _ in range(5)]
    sU0 = S.one(); sU1 = S.one(); sZq = S.one()
    t = [S.one() for _ in range(8)]
    mB = [S.rng(2) for _ in range(4)]
    pr = [4+2*i for i in range(8)]
    sSt = S.rng(2)
    vLane, vG, vN = V.one(), V.one(), V.one()
    vKo = [V.one() for _ in range(4)]
    vVo = [V.one() for _ in range(2)]
    vKa = [V.one() for _ in range(4)]
    vSoff, vJ16, vPat, vCtx4g, vMaskV = [V.one() for _ in range(5)]
    vM, vL = V.one(), V.one()
    vStamp = V.one()
    tv = [V.one() for _ in range(8)]
    Q = V.rng(16, 4)
    O = V.rng(32, 4)
    KF = V.rng(32, 4)
    Sx = V.rng(8, 4)
    P = V.rng(4, 4)
    AT = V.rng(8, 4)
    VB = V.rng(64, 4)
    nstamp = [0]
    def stamp():
        if not stamps: return
        k = nstamp[0]; nstamp[0] += 1
        A(f"s_memrealtime {sr(sSt,2)}\ns_waitcnt lgkmcnt(0)\nv_writelane_b32 {vStamp}, {sr(sSt)}, {k}")

    A(f"""
    s_cmp_ge_u32 s2, 256
    s_cbranch_scc1 L_end
    s_load_dwordx16 s[4:19], s[0:1], 0
    v_and_b32 {vLane}, 63, v0
    v_lshrrev_b32 {tv[0]}, 6, v0
    v_lshrrev_b32 {vG}, 4, {vLane}
    v_readfirstlane_b32 {sW}, {tv[0]}
    v_and_b32 {vN}, 15, v0
    s_and_b32 {sHp}, s2, 3
    s_lshr_b32 {sSlot}, s2, 2
    s_and_b32 {sHl}, {sW}, 1
    s_lshr_b32 {sPart}, {sW}, 1
    s_lshl_b32 {sHead}, {sHp}, 1
    s_add_u32 {sHead}, {sHead}, {sHl}
    s_lshl_b32 {sKb}, {sW}, 14
    s_mov_b32 {sC}, {CSC:#x}
    s_mov_b32 {sSelLo}, 0x05040100
    s_mov_b32 {sSelHi}, 0x07060302
    s_movk_i32 {t[0]}, 0x1000
    s_movk_i32 {t[1]}, 0x2000
    s_movk_i32 {t[2]}, 0x3000
    v_lshlrev_b32 {tv[0]}, 3, v0
    v_mov_b32 {vStamp}, 0
    """)
    A(f"""
    v_lshrrev_b32 {tv[2]}, 2, {vN}
    v_lshlrev_b32 {tv[1]}, 13, {tv[2]}
    v_and_b32 {tv[3]}, 3, {vN}
    v_lshl_add_u32 {tv[1]}, {tv[3]}, 8, {tv[1]}
    v_lshl_add_u32 {tv[1]}, {vG}, 4, {tv[1]}
    s_lshl_b32 {t[3]}, {sHead}, 10
    v_add_u32 {tv[1]}, {t[3]}, {tv[1]}
    s_waitcnt lgkmcnt(0)
    s_load_dwordx4 s[48:51], s[12:13], 0
    s_mov_b32 s{srdBT}, s{pBT}
    s_mov_b32 s{srdBT+1}, s{pBT+1}
    s_movk_i32 s{srdBT+2}, 0x4000
    s_mov_b32 s{srdBT+3}, 0x20000
    """)
    TB = KF
    A(f"buffer_load_dwordx2 {vr(TB,2)}, {tv[0]}, {sr(srdBT,4)}, 0 offen")
    for b in range(1, 4):
        A(f"buffer_load_dwordx2 {vr(TB+2*b,2)}, {tv[0]}, {sr(srdBT,4)}, {t[b-1]} offen")
    A(f"""
    s_mov_b32 s{srdQ}, s{pQ}
    s_mov_b32 s{srdQ+1}, s{pQ+1}
    s_mov_b32 s{srdQ+2}, 0x8000
    s_mov_b32 s{srdQ+3}, 0x20000
    """)
    for s in range(4):
        A(f"buffer_load_dwordx4 {vr(Q+4*s,4)}, {tv[1]}, {sr(srdQ,4)}, 0 offen offset:{64*s}")
    stamp()
    for srd, p, n in ((srdK, pK, KV_BYTES), (srdV, pV, KV_BYTES), (srdWS, pWS, WS_BYTES), (srdOUT, pOUT, 32768), (srdDBG, pDBG, 256)):
        A(f"s_mov_b32 s{srd}, s{p}\ns_mov_b32 s{srd+1}, s{p+1}\ns_mov_b32 s{srd+2}, {n:#x}\ns_mov_b32 s{srd+3}, 0x20000")
    A(f"s_lshl_b32 {t[3]}, {sHead}, 8")
    for i in range(4):
        A(f"""
        v_add_u32 {tv[2]}, {4*i}, {vG}
        v_xor_b32 {tv[3]}, {tv[2]}, {vN}
        v_lshlrev_b32 {tv[3]}, 4, {tv[3]}
        v_lshl_add_u32 {vKo[i]}, {tv[2]}, 11, {tv[3]}
        v_add_u32 {vKo[i]}, {t[3]}, {vKo[i]}
        """)
        if i: A(f"v_subrev_u32 {vKo[i]}, {1024*i}, {vKo[i]}")
        A(f"""
        v_lshl_add_u32 {vKa[i]}, {vN}, 8, {tv[3]}
        v_add_u32 {vKa[i]}, {sKb}, {vKa[i]}
        """)
    A(f"""
    v_lshlrev_b32 {tv[2]}, 13, {vG}
    v_lshl_add_u32 {vVo[0]}, {vN}, 4, {tv[2]}
    v_add_u32 {vVo[0]}, {t[3]}, {vVo[0]}
    v_add_u32 {vVo[1]}, 0x1000, {vVo[0]}
    v_mov_b32 {vMaskV}, {MASKV:#x}
    v_mul_f32 {vM}, {sC}, {vMaskV}
    v_mov_b32 {vL}, 0
    """)
    for i in range(32):
        A(f"v_mov_b32 {vr(O+i)}, 0")
    A(f"s_waitcnt lgkmcnt(0)\ns_mov_b32 {sZq}, 0")
    for b in range(4):
        A(f"""
        s_cmp_lt_i32 s{sCtx+b}, 1
        s_cselect_b32 {t[4]}, {1<<b}, 0
        s_cselect_b32 s{sCtx+b}, 0x4000, s{sCtx+b}
        s_or_b32 {sZq}, {sZq}, {t[4]}
        s_min_u32 s{sCtx+b}, s{sCtx+b}, 0x4000
        """)
    A(f"""
    s_min_u32 {t[4]}, s{sCtx}, s{sCtx+1}
    s_min_u32 {t[5]}, s{sCtx+2}, s{sCtx+3}
    s_min_u32 {t[4]}, {t[4]}, {t[5]}
    s_lshr_b32 {t[4]}, {t[4]}, 4
    """)
    A(f"""
    v_lshrrev_b32 {tv[2]}, 2, {vN}
    v_mov_b32 {vCtx4g}, s{sCtx}
    v_mov_b32 {tv[3]}, s{sCtx+1}
    v_cmp_eq_u32 vcc, 1, {tv[2]}
    v_cndmask_b32 {vCtx4g}, {vCtx4g}, {tv[3]}, vcc
    v_mov_b32 {tv[3]}, s{sCtx+2}
    v_cmp_eq_u32 vcc, 2, {tv[2]}
    v_cndmask_b32 {vCtx4g}, {vCtx4g}, {tv[3]}, vcc
    v_mov_b32 {tv[3]}, s{sCtx+3}
    v_cmp_eq_u32 vcc, 3, {tv[2]}
    v_cndmask_b32 {vCtx4g}, {vCtx4g}, {tv[3]}, vcc
    v_lshlrev_b32 {tv[3]}, 2, {vG}
    v_sub_u32 {vCtx4g}, {vCtx4g}, {tv[3]}
    v_add_u32 {tv[4]}, {TBL:#x}, {tv[0]}
    s_lshl_b32 {t[5]}, {sW}, 2
    s_add_u32 {t[5]}, {t[5]}, {MINS:#x}
    v_mov_b32 {tv[5]}, {t[5]}
    v_mov_b32 {tv[6]}, {MINS:#x}
    s_waitcnt vmcnt(4)
    """)
    stamp()
    for b in range(4):
        A(f"ds_write_b64 {tv[4]}, {vr(TB+2*b,2)} offset:{4096*b}")
    for e in range(2):
        A(f"""
        v_xor_b32 {tv[2]}, {vr(TB+e)}, {vr(TB+2+e)}
        v_xor_b32 {tv[3]}, {vr(TB+e)}, {vr(TB+4+e)}
        v_xor_b32 {tv[7]}, {vr(TB+e)}, {vr(TB+6+e)}
        v_or3_b32 {tv[2]}, {tv[2]}, {tv[3]}, {tv[7]}
        v_cmp_ne_u32 {sr(pr[e],2)}, 0, {tv[2]}
        """)
    A(f"""
    s_ff1_i32_b64 {t[5]}, {sr(pr[0],2)}
    s_ff1_i32_b64 {t[6]}, {sr(pr[1],2)}
    s_lshl_b32 {t[5]}, {t[5]}, 1
    s_lshl_b32 {t[6]}, {t[6]}, 1
    s_or_b32 {t[6]}, {t[6]}, 1
    s_min_u32 {t[5]}, {t[5]}, {t[6]}
    s_lshl_b32 {t[6]}, {sW}, 7
    s_cmp_lt_u32 {t[5]}, 128
    s_cselect_b32 {t[6]}, {t[6]}, 0x400
    s_cselect_b32 {t[5]}, {t[5]}, 0
    s_add_u32 {t[5]}, {t[5]}, {t[6]}
    v_mov_b32 {tv[2]}, {t[5]}
    ds_write_b32 {tv[5]}, {tv[2]}
    s_waitcnt lgkmcnt(0)
    s_barrier
    ds_read_b128 {vr(KF+8,4)}, {tv[6]}
    ds_read_b128 {vr(KF+12,4)}, {tv[6]} offset:16
    """)
    for b in range(4):
        A(f"s_add_u32 {sE[b+1]}, s{sCtx+b}, 15\ns_lshr_b32 {sE[b+1]}, {sE[b+1]}, 4")
    A(f"""
    v_lshlrev_b32 {tv[3]}, 2, {vLane}
    v_add_u32 {tv[3]}, {sPart}, {tv[3]}
    s_waitcnt lgkmcnt(0)
    v_min3_u32 {tv[2]}, {vr(KF+8)}, {vr(KF+9)}, {vr(KF+10)}
    v_min3_u32 {tv[7]}, {vr(KF+11)}, {vr(KF+12)}, {vr(KF+13)}
    v_min3_u32 {tv[2]}, {tv[2]}, {vr(KF+14)}, {vr(KF+15)}
    v_min_u32 {tv[2]}, {tv[2]}, {tv[7]}
    v_readfirstlane_b32 {sE[0]}, {tv[2]}
    s_min_u32 {sE[0]}, {sE[0]}, {t[4]}             ; Ps
    """)
    for b in range(4):
        A(f"s_sub_u32 {sE[b+1]}, {sE[b+1]}, {sE[0]}\ns_add_u32 {sE[b+1]}, {sE[b+1]}, {sE[b]}")
    A(f"""
    s_mul_i32 {sU0}, {sSlot}, {sE[4]}
    s_add_u32 {sU1}, {sU0}, {sE[4]}
    s_lshr_b32 {sU0}, {sU0}, 6
    s_lshr_b32 {sU1}, {sU1}, 6
    v_add_u32 {tv[3]}, {sU0}, {tv[3]}              ; u
    """)
    for b in range(1, 4):
        A(f"s_sub_u32 {t[b-1]}, {sE[0]}, {sE[b]}\ns_add_u32 {t[b-1]}, {t[b-1]}, {1024*b}")
    A(f"""
    v_mov_b32 {tv[2]}, 0
    v_mov_b32 {vPat}, 0xffff
    v_cmp_gt_u32 {sr(pr[0],2)}, {sE[0]}, {tv[3]}
    v_cmp_gt_u32 {sr(pr[1],2)}, {sE[1]}, {tv[3]}
    v_cmp_gt_u32 {sr(pr[2],2)}, {sE[2]}, {tv[3]}
    v_cmp_gt_u32 {sr(pr[3],2)}, {sE[3]}, {tv[3]}
    v_cmp_gt_u32 {sr(pr[4],2)}, {sU1}, {tv[3]}
    v_mov_b32 {tv[4]}, {t[0]}
    v_mov_b32 {tv[5]}, {t[1]}
    v_mov_b32 {tv[6]}, {t[2]}
    v_cndmask_b32 {tv[2]}, {tv[4]}, {tv[2]}, {sr(pr[1],2)}
    v_cndmask_b32 {tv[2]}, {tv[5]}, {tv[2]}, {sr(pr[2],2)}
    v_cndmask_b32 {tv[2]}, {tv[6]}, {tv[2]}, {sr(pr[3],2)}
    v_add_u32 {tv[2]}, {tv[2]}, {tv[3]}
    v_cndmask_b32 {tv[2]}, 0, {tv[2]}, {sr(pr[4],2)}
    v_lshlrev_b32 {tv[4]}, 2, {tv[2]}
    v_add_u32 {tv[4]}, {TBL:#x}, {tv[4]}
    ds_read_b32 {vSoff}, {tv[4]}
    v_cndmask_b32 {vPat}, 15, {vPat}, {sr(pr[0],2)}
    v_mov_b32 {tv[4]}, 0xf0
    v_mov_b32 {tv[5]}, 0xf00
    v_mov_b32 {tv[6]}, 0xf000
    v_cndmask_b32 {vPat}, {tv[4]}, {vPat}, {sr(pr[1],2)}
    v_cndmask_b32 {vPat}, {tv[5]}, {vPat}, {sr(pr[2],2)}
    v_cndmask_b32 {vPat}, {tv[6]}, {vPat}, {sr(pr[3],2)}
    v_cndmask_b32 {vPat}, 0, {vPat}, {sr(pr[4],2)}
    v_and_b32 {vJ16}, 0x3ff, {tv[2]}
    v_lshlrev_b32 {vJ16}, 4, {vJ16}
    s_bcnt1_i32_b64 {sN}, {sr(pr[4],2)}
    s_waitcnt lgkmcnt(0)
    v_min_u32 {vSoff}, 0x9ff, {vSoff}
    v_lshlrev_b32 {vSoff}, 15, {vSoff}
    """)
    def issueK(par, offs, nrs):
        for x in range(2):
            A(f"s_add_u32 m0, {sKb}, {par*8192 + x*4096}\ns_mov_b32 s{srdK+2}, {nrs[x]}")
            for i in range(4):
                A(f"buffer_load_dwordx4 {vKo[i]}, {sr(srdK,4)}, {offs[x]} offen offset:{1024*i} {ntk} lds")
    def issueV(par, offs, nrs):
        for x in range(2):
            A(f"s_mov_b32 s{srdV+2}, {nrs[x]}")
            for j in range(4):
                A(f"buffer_load_dwordx4 {vr(VB+par*32+x*16+j*4,4)}, {vVo[j>>1]}, {sr(srdV,4)}, {offs[x]} offen offset:{2048*(j&1)} {ntv}")
    for k in range(4):
        A(f"v_readlane_b32 {t[k]}, {vSoff}, {k}")
    for k in range(4):
        A(f"s_cmp_gt_u32 {sN}, {k}\ns_cselect_b32 {t[4+k]}, {KV_BYTES:#x}, 0")
    issueK(0, t[0:2], t[4:6]); issueV(0, t[0:2], t[4:6])
    issueK(1, t[2:4], t[6:8]); issueV(1, t[2:4], t[6:8])
    stamp()
    A(f"""
    v_mul_u32_u24 {tv[2]}, {sE[4]}, {vLane}
    v_add_u32 {tv[3]}, {sE[4]}, {tv[2]}
    v_lshrrev_b32 {tv[2]}, 6, {tv[2]}              ; st
    v_lshrrev_b32 {tv[3]}, 6, {tv[3]}              ; en
    v_cmp_lt_u32 {sr(pr[0],2)}, {tv[2]}, {tv[3]}   ; nonempty
    v_cmp_gt_u32 {sr(pr[1],2)}, {sE[0]}, {tv[2]}
    """)
    for b in range(4):
        A(f"""
        v_cmp_gt_u32 {sr(pr[2],2)}, {sE[b+1]}, {tv[2]}
        v_cmp_lt_u32 {sr(pr[3],2)}, {sE[b]}, {tv[3]}
        s_and_b64 {sr(pr[2],2)}, {sr(pr[2],2)}, {sr(pr[3],2)}
        s_or_b64 {sr(pr[2],2)}, {sr(pr[2],2)}, {sr(pr[1],2)}
        s_and_b64 {sr(mB[b],2)}, {sr(pr[2],2)}, {sr(pr[0],2)}
        """)
    A(f"""
    s_waitcnt vmcnt(32)
    s_cmp_eq_u32 {sZq}, 0
    s_cbranch_scc1 L_noz
    v_lshrrev_b32 {tv[2]}, 2, {vN}
    v_lshrrev_b32 {tv[2]}, {tv[2]}, {sZq}
    """.replace(f"v_lshrrev_b32 {tv[2]}, {tv[2]}, {sZq}", f"v_mov_b32 {tv[3]}, {sZq}\nv_lshrrev_b32 {tv[2]}, {tv[2]}, {tv[3]}"))
    A(f"v_and_b32 {tv[2]}, 1, {tv[2]}\nv_cmp_eq_u32 vcc, 0, {tv[2]}")
    for i in range(16):
        A(f"v_cndmask_b32 {vr(Q+i)}, 0, {vr(Q+i)}, vcc")
    A("s_nop 1\nL_noz:")
    A(f"""
    s_mov_b32 {sI0}, 0
    s_cmp_eq_u32 {sN}, 0
    s_cbranch_scc1 L_loopdone
    L_loop:
    """)
    sOffA, sOffB, sNrA, sNrB, sJ0, sJ1, sP0, sP1 = t
    first = [True]
    def tile(par):
        S0, S1 = Sx, Sx + 4
        A(f"""
        s_add_u32 {sNrA}, {sI0}, 4
        s_add_u32 {sNrB}, {sI0}, 5
        s_add_u32 {sP1}, {sI0}, 1
        v_readlane_b32 {sOffA}, {vSoff}, {sNrA}
        v_readlane_b32 {sOffB}, {vSoff}, {sNrB}
        v_readlane_b32 {sJ0}, {vJ16}, {sI0}
        v_readlane_b32 {sJ1}, {vJ16}, {sP1}
        v_readlane_b32 {sP0}, {vPat}, {sI0}
        v_readlane_b32 {sP1}, {vPat}, {sP1}
        s_cmp_lt_u32 {sNrA}, {sN}
        s_cselect_b32 {sNrA}, {KV_BYTES:#x}, 0
        s_cmp_lt_u32 {sNrB}, {sN}
        s_cselect_b32 {sNrB}, {KV_BYTES:#x}, 0
        s_mul_i32 {sr(pr[0])}, {sP0}, 0x10001
        s_mul_i32 {sr(pr[1])}, {sP1}, 0x10001
        s_mov_b32 {sr(pr[0]+1)}, {sr(pr[0])}
        s_mov_b32 {sr(pr[1]+1)}, {sr(pr[1])}
        v_subrev_u32 {tv[0]}, {sJ0}, {vCtx4g}
        v_subrev_u32 {tv[1]}, {sJ1}, {vCtx4g}
        v_cndmask_b32 {tv[0]}, 0, {tv[0]}, {sr(pr[0],2)}
        v_cndmask_b32 {tv[1]}, 0, {tv[1]}, {sr(pr[1],2)}
        s_waitcnt vmcnt(24)
        """)
        if first[0]:
            stamp(); first[0] = False
        for x in range(2):
            for s in range(4):
                A(f"ds_read_b128 {vr(KF+x*16+s*4,4)}, {vKa[s]} offset:{par*8192+x*4096}")
        for x in range(2):
            for r in range(4):
                A(f"v_cmp_lt_i32 {sr(pr[x*4+r],2)}, {r}, {tv[x]}")
        for x in range(2):
            A(f"s_waitcnt lgkmcnt({4*(1-x)})")
            for s in range(4):
                c = '0' if s == 0 else vr(Sx+4*x, 4)
                A(f"v_mfma_f32_16x16x32_bf16 {vr(Sx+4*x,4)}, {vr(KF+x*16+s*4,4)}, {vr(Q+4*s,4)}, {c}")
        issueK(par, (sOffA, sOffB), (sNrA, sNrB))
        for x in range(2):
            for r in range(4):
                A(f"v_cndmask_b32 {vr(Sx+4*x+r)}, {vMaskV}, {vr(Sx+4*x+r)}, {sr(pr[x*4+r],2)}")
        A(f"""
        v_max3_f32 {tv[0]}, {vr(S0)}, {vr(S0+1)}, {vr(S0+2)}
        v_max3_f32 {tv[1]}, {vr(S0+3)}, {vr(S1)}, {vr(S1+1)}
        v_max3_f32 {tv[0]}, {tv[0]}, {vr(S1+2)}, {vr(S1+3)}
        v_max_f32 {tv[0]}, {tv[0]}, {tv[1]}
        v_mov_b32 {tv[1]}, {tv[0]}
        v_permlane32_swap_b32 {tv[0]}, {tv[1]}
        v_max_f32 {tv[0]}, {tv[0]}, {tv[1]}
        v_mov_b32 {tv[1]}, {tv[0]}
        v_permlane16_swap_b32 {tv[0]}, {tv[1]}
        v_max_f32 {tv[0]}, {tv[0]}, {tv[1]}
        v_mul_f32 {tv[0]}, {sC}, {tv[0]}
        v_max_f32 {tv[0]}, {tv[0]}, {vM}            ; mnew
        v_sub_f32 {tv[1]}, {vM}, {tv[0]}
        v_mov_b32 {vM}, {tv[0]}
        v_exp_f32 {tv[1]}, {tv[1]}                  ; alpha
        """)
        for i in range(8):
            A(f"v_fma_f32 {vr(Sx+i)}, {vr(Sx+i)}, {sC}, -{tv[0]}")
        for i in range(8):
            A(f"v_exp_f32 {vr(Sx+i)}, {vr(Sx+i)}")
        A(f"v_cmp_neq_f32 vcc, 1.0, {tv[1]}")
        A(f"""
        v_add_f32 {tv[2]}, {vr(Sx)}, {vr(Sx+1)}
        v_add_f32 {tv[3]}, {vr(Sx+2)}, {vr(Sx+3)}
        v_add_f32 {tv[4]}, {vr(Sx+4)}, {vr(Sx+5)}
        v_add_f32 {tv[5]}, {vr(Sx+6)}, {vr(Sx+7)}
        v_add_f32 {tv[2]}, {tv[2]}, {tv[3]}
        v_add_f32 {tv[4]}, {tv[4]}, {tv[5]}
        v_add_f32 {tv[2]}, {tv[2]}, {tv[4]}
        v_fma_f32 {vL}, {vL}, {tv[1]}, {tv[2]}
        """)
        for i in range(4):
            A(f"v_cvt_pk_bf16_f32 {vr(P+i)}, {vr(Sx+2*i)}, {vr(Sx+2*i+1)}")
        A(f"s_cbranch_vccz L_nors{par}")
        for i in range(32):
            A(f"v_mul_f32 {vr(O+i)}, {tv[1]}, {vr(O+i)}")
        A(f"L_nors{par}:\ns_waitcnt vmcnt(24)")
        vb = VB + par * 32
        def perms(d):
            sel = sSelHi if d & 1 else sSelLo
            m = d >> 1
            for jj in range(4):
                x, j0 = jj >> 1, (jj & 1) * 2
                lo = vb + x*16 + j0*4 + m
                hi = vb + x*16 + (j0+1)*4 + m
                A(f"v_perm_b32 {vr(AT+(d&1)*4+jj)}, {vr(hi)}, {vr(lo)}, {sel}")
        perms(0)
        for d in range(8):
            if d < 7: perms(d+1)
            A(f"v_mfma_f32_16x16x32_bf16 {vr(O+4*d,4)}, {vr(AT+(d&1)*4,4)}, {vr(P,4)}, {vr(O+4*d,4)}")
        issueV(par, (sOffA, sOffB), (sNrA, sNrB))
        A(f"s_add_u32 {sI0}, {sI0}, 2\ns_cmp_lt_u32 {sI0}, {sN}")
    tile(0)
    A("s_cbranch_scc0 L_loopdone")
    tile(1)
    A("s_cbranch_scc1 L_loop")
    A("L_loopdone:")
    stamp()
    A(f"""
    v_mov_b32 {tv[1]}, {vL}
    v_lshlrev_b32 {tv[2]}, 4, {vLane}
    v_permlane32_swap_b32 {vL}, {tv[1]}
    v_add_f32 {vL}, {vL}, {tv[1]}
    v_add_u32 {tv[3]}, {sKb}, {tv[2]}
    v_mov_b32 {tv[1]}, {vL}
    v_lshlrev_b32 {tv[4]}, 3, {vLane}
    v_add_u32 {tv[4]}, {sKb}, {tv[4]}
    v_permlane16_swap_b32 {vL}, {tv[1]}
    v_add_f32 {vr(P+1)}, {vL}, {tv[1]}
    v_mov_b32 {vr(P)}, {vM}
    s_waitcnt vmcnt(0)
    """)
    for d in range(8):
        A(f"ds_write_b128 {tv[3]}, {vr(O+4*d,4)} offset:{1024*d}")
    A(f"ds_write_b64 {tv[4]}, {vr(P,2)} offset:8192")
    A(f"""
    s_lshl_b32 {t[0]}, {sHl}, 14
    s_lshl_b32 {t[1]}, {sPart}, 11
    s_add_u32 {t[1]}, {t[1]}, {t[0]}
    v_add_u32 {tv[2]}, {t[1]}, {tv[2]}
    v_add_u32 {tv[3]}, 0x10000, {tv[2]}
    v_lshlrev_b32 {tv[4]}, 3, {vLane}
    v_add_u32 {tv[4]}, {t[0]}, {tv[4]}
    v_add_u32 {tv[5]}, 0x10000, {tv[4]}
    s_waitcnt lgkmcnt(0)
    s_barrier
    """)
    ML = KF
    R = VB
    for p in range(4):
        A(f"ds_read_b64 {vr(ML+2*p,2)}, {tv[4+(p>>1)]} offset:{8192+(p&1)*32768}")
    for p in range(4):
        for dd in range(2):
            A(f"ds_read_b128 {vr(R+p*8+dd*4,4)}, {tv[2+(p>>1)]} offset:{(p&1)*32768+dd*1024}")
    A(f"""
    v_lshrrev_b32 {tv[0]}, 2, {vN}                 ; b
    v_and_b32 {tv[1]}, 3, {vN}                     ; qh
    v_lshlrev_b32 {tv[6]}, 12, {tv[0]}
    v_lshl_add_u32 {tv[6]}, {tv[1]}, 9, {tv[6]}
    v_lshl_add_u32 {tv[6]}, {vG}, 4, {tv[6]}       ; b*4096 + qh*512 + g*16
    s_lshl_b32 {t[0]}, {sHp}, 6
    s_add_u32 {t[0]}, {t[0]}, {sSlot}
    s_lshl_b32 {t[0]}, {t[0]}, 14
    s_lshl_b32 {t[1]}, {sHl}, 11
    s_add_u32 {t[0]}, {t[0]}, {t[1]}
    s_lshl_b32 {t[1]}, {sPart}, 7
    s_add_u32 {t[0]}, {t[0]}, {t[1]}
    v_lshlrev_b32 {tv[7]}, 12, {tv[0]}
    v_lshl_add_u32 {tv[7]}, {tv[1]}, 9, {tv[7]}
    s_lshl_b32 {t[1]}, {sHp}, 14
    s_lshl_b32 {t[2]}, {sHl}, 11
    s_add_u32 {t[1]}, {t[1]}, {t[2]}
    s_lshl_b32 {t[2]}, {sSlot}, 3
    s_add_u32 {t[1]}, {t[1]}, {t[2]}
    s_add_u32 {t[1]}, {t[1]}, {ML_BASE:#x}
    s_mov_b32 {t[2]}, 0
    s_mov_b32 {t[3]}, 0
    """)
    for b in range(4):
        A(f"""
        s_bitcmp1_b64 {sr(mB[b],2)}, {sSlot}
        s_cselect_b32 {t[4]}, {1<<b}, 0
        s_cselect_b32 {t[5]}, {0xf<<(4*b):#x}, 0
        s_or_b32 {t[2]}, {t[2]}, {t[4]}
        s_or_b32 {t[3]}, {t[3]}, {t[5]}
        """)
    A(f"""
    s_mul_i32 {sr(pr[0])}, {t[3]}, 0x10001
    s_mov_b32 {sr(pr[0]+1)}, {sr(pr[0])}
    s_waitcnt lgkmcnt(8)
    v_max3_f32 {tv[0]}, {vr(ML)}, {vr(ML+2)}, {vr(ML+4)}
    v_max_f32 {vr(P)}, {tv[0]}, {vr(ML+6)}
    """)
    for p in range(4):
        A(f"v_sub_f32 {vr(ML+2*p)}, {vr(ML+2*p)}, {vr(P)}")
    for p in range(4):
        A(f"v_exp_f32 {vr(ML+2*p)}, {vr(ML+2*p)}")
    A(f"v_mul_f32 {vr(P+1)}, {vr(ML)}, {vr(ML+1)}")
    for p in range(1, 4):
        A(f"v_fmac_f32 {vr(P+1)}, {vr(ML+2*p)}, {vr(ML+2*p+1)}")
    A("s_waitcnt lgkmcnt(0)")
    for i in range(8):
        A(f"v_mul_f32 {vr(O+i)}, {vr(ML)}, {vr(R+i)}")
    for p in range(1, 4):
        for i in range(8):
            A(f"v_fmac_f32 {vr(O+i)}, {vr(ML+2*p)}, {vr(R+p*8+i)}")
    A(f"""
    s_cmp_eq_u32 {t[2]}, 0
    s_cbranch_scc1 L_nostore
    s_mov_b64 exec, {sr(pr[0],2)}
    buffer_store_dwordx4 {vr(O,4)}, {tv[6]}, {sr(srdWS,4)}, {t[0]} offen sc1
    buffer_store_dwordx4 {vr(O+4,4)}, {tv[6]}, {sr(srdWS,4)}, {t[0]} offen offset:64 sc1
    s_cmp_lg_u32 {sPart}, 0
    s_cbranch_scc1 L_noml
    s_mov_b32 exec_lo, {t[3]}
    s_mov_b32 exec_hi, 0
    buffer_store_dwordx2 {vr(P,2)}, {tv[7]}, {sr(srdWS,4)}, {t[1]} offen sc1
    L_noml:
    s_mov_b64 exec, -1
    L_nostore:
    """)
    stamp()
    A(f"""
    v_mov_b32 {tv[5]}, {FLAG:#x}
    s_waitcnt vmcnt(0)
    s_barrier
    s_cmp_lg_u32 {sW}, 0
    s_cbranch_scc1 L_waitflag
    v_mov_b32 {tv[0]}, 0
    s_cmp_eq_u32 {t[2]}, 0
    s_cbranch_scc1 L_putflag
    """)
    for b in range(4):
        A(f"s_bcnt1_i32_b64 {t[4]}, {sr(mB[b],2)}\nv_writelane_b32 {tv[1]}, {t[4]}, {b}")
    A(f"""
    s_lshl_b32 {t[4]}, {sHp}, 4
    v_lshlrev_b32 {tv[2]}, 2, {vLane}
    v_mov_b32 {tv[3]}, 1
    s_mov_b32 exec_lo, {t[2]}
    s_mov_b32 exec_hi, 0
    buffer_atomic_add {tv[3]}, {tv[2]}, {sr(srdDBG,4)}, {t[4]} offen sc0
    s_waitcnt vmcnt(0)
    v_add_u32 {tv[3]}, 1, {tv[3]}
    v_cmp_eq_u32 vcc, {tv[3]}, {tv[1]}
    s_mov_b64 exec, -1
    v_mov_b32 {tv[0]}, vcc_lo
    L_putflag:
    ds_write_b32 {tv[5]}, {tv[0]}
    s_waitcnt lgkmcnt(0)
    L_waitflag:
    s_barrier
    ds_read_b32 {tv[0]}, {tv[5]}
    v_lshlrev_b32 {tv[6]}, 3, {vLane}
    v_lshrrev_b32 {tv[1]}, 1, {vLane}
    v_and_b32 {tv[1]}, 3, {tv[1]}
    v_lshlrev_b32 {tv[1]}, 5, {tv[1]}
    v_and_b32 {tv[2]}, 1, {vLane}
    v_lshl_add_u32 {tv[1]}, {tv[2]}, 4, {tv[1]}
    v_lshrrev_b32 {tv[2]}, 3, {vLane}
    v_add_u32 {tv[1]}, {tv[1]}, {tv[2]}
    v_lshlrev_b32 {tv[7]}, 1, {tv[1]}
    s_waitcnt lgkmcnt(0)
    v_readfirstlane_b32 {sN}, {tv[0]}
    """)
    stamp()
    sLast, sB = sN, sI0
    mA, mC, mS = pr[0], pr[1], pr[2]
    RR = KF + 0
    RR = VB
    A(f"""
    L_comb:
    s_cmp_eq_u32 {sLast}, 0
    s_cbranch_scc1 L_fin
    s_ff1_i32_b32 {sB}, {sLast}
    s_bitset0_b32 {sLast}, {sB}
    s_cmp_eq_u32 {sB}, 0
    s_cselect_b64 {sr(mS,2)}, {sr(mB[0],2)}, {sr(mB[1],2)}
    s_cmp_eq_u32 {sB}, 2
    s_cselect_b64 {sr(mS,2)}, {sr(mB[2],2)}, {sr(mS,2)}
    s_cmp_eq_u32 {sB}, 3
    s_cselect_b64 {sr(mS,2)}, {sr(mB[3],2)}, {sr(mS,2)}
    s_mov_b64 {sr(mA,2)}, {sr(mS,2)}
    s_mov_b64 {sr(mC,2)}, {sr(mS,2)}
    s_lshl_b32 {t[0]}, {sB}, 3
    s_add_u32 {t[0]}, {t[0]}, {sW}
    s_lshl_b32 {t[0]}, {t[0]}, 9
    s_lshl_b32 {t[1]}, {sHp}, 14
    s_add_u32 {t[1]}, {t[1]}, {t[0]}
    s_add_u32 {t[1]}, {t[1]}, {ML_BASE:#x}
    s_lshl_b32 {t[2]}, {sHp}, 20
    s_add_u32 {t[2]}, {t[2]}, {t[0]}
    buffer_load_dwordx2 {vr(KF,2)}, {tv[6]}, {sr(srdWS,4)}, {t[1]} offen sc1
    v_mov_b32 {vr(O)}, 0
    v_mov_b32 {vr(O+1)}, 0
    L_pass:
    """)
    for k in range(32):
        A(f"""
        s_cmp_eq_u64 {sr(mA,2)}, 0
        s_cbranch_scc1 L_issued
        s_ff1_i32_b64 {t[3]}, {sr(mA,2)}
        s_bitset0_b64 {sr(mA,2)}, {t[3]}
        s_lshl_b32 {t[3]}, {t[3]}, 14
        s_add_u32 {t[3]}, {t[3]}, {t[2]}
        buffer_load_dwordx2 {vr(RR+2*k,2)}, {tv[6]}, {sr(srdWS,4)}, {t[3]} offen sc1
        """)
    A(f"""
    L_issued:
    v_mov_b32 {tv[0]}, {NEGBIG:#x}
    s_waitcnt vmcnt(0)
    v_cndmask_b32 {tv[0]}, {tv[0]}, {vr(KF)}, {sr(mS,2)}
    v_cndmask_b32 {tv[1]}, 0, {vr(KF+1)}, {sr(mS,2)}
    v_mov_b32 {tv[2]}, {tv[0]}
    """)
    for ror in (8, 4, 2, 1):
        A(f"v_max_f32_dpp {tv[2]}, {tv[2]}, {tv[2]} row_ror:{ror} row_mask:0xf bank_mask:0xf")
    for sw in (16, 32):
        A(f"v_mov_b32 {tv[3]}, {tv[2]}\nv_permlane{sw}_swap_b32 {tv[2]}, {tv[3]}\nv_max_f32 {tv[2]}, {tv[2]}, {tv[3]}")
    A(f"""
    v_sub_f32 {tv[0]}, {tv[0]}, {tv[2]}
    v_exp_f32 {tv[0]}, {tv[0]}
    v_mul_f32 {tv[1]}, {tv[1]}, {tv[0]}
    """)
    for ror in (8, 4, 2, 1):
        A(f"v_add_f32_dpp {tv[1]}, {tv[1]}, {tv[1]} row_ror:{ror} row_mask:0xf bank_mask:0xf")
    for sw in (16, 32):
        A(f"v_mov_b32 {tv[3]}, {tv[1]}\nv_permlane{sw}_swap_b32 {tv[1]}, {tv[3]}\nv_add_f32 {tv[1]}, {tv[1]}, {tv[3]}")
    for k in range(32):
        A(f"""
        s_cmp_eq_u64 {sr(mC,2)}, {sr(mA,2)}
        s_cbranch_scc1 L_accd
        s_ff1_i32_b64 {t[3]}, {sr(mC,2)}
        s_bitset0_b64 {sr(mC,2)}, {t[3]}
        v_readlane_b32 {t[4]}, {tv[0]}, {t[3]}
        v_fmac_f32 {vr(O)}, {t[4]}, {vr(RR+2*k)}
        v_fmac_f32 {vr(O+1)}, {t[4]}, {vr(RR+2*k+1)}
        """)
    A(f"""
    L_accd:
    s_cmp_lg_u64 {sr(mA,2)}, 0
    s_cbranch_scc1 L_pass
    v_rcp_f32 {tv[1]}, {tv[1]}
    s_lshl_b32 {t[0]}, {sB}, 5
    s_lshl_b32 {t[1]}, {sHp}, 3
    s_add_u32 {t[0]}, {t[0]}, {t[1]}
    s_add_u32 {t[0]}, {t[0]}, {sW}
    s_lshl_b32 {t[0]}, {t[0]}, 8
    v_mul_f32 {vr(O)}, {vr(O)}, {tv[1]}
    v_mul_f32 {vr(O+1)}, {vr(O+1)}, {tv[1]}
    v_cvt_pk_bf16_f32 {tv[2]}, {vr(O)}, {vr(O+1)}
    buffer_store_short {tv[2]}, {tv[7]}, {sr(srdOUT,4)}, {t[0]} offen
    buffer_store_short_d16_hi {tv[2]}, {tv[7]}, {sr(srdOUT,4)}, {t[0]} offen offset:16
    s_nop 1
    s_branch L_comb
    L_fin:
    """)
    if stamps:
        A("s_waitcnt vmcnt(0)")
        stamp()
        A(f"""
        s_lshl_b32 {t[0]}, s2, 3
        s_add_u32 {t[0]}, {t[0]}, {sW}
        s_lshl_b32 {t[0]}, {t[0]}, 5
        s_add_u32 {t[0]}, {t[0]}, {STAMP_BASE:#x}
        v_lshlrev_b32 {tv[0]}, 2, {vLane}
        s_mov_b64 exec, 0xff
        buffer_store_dword {vStamp}, {tv[0]}, {sr(srdWS,4)}, {t[0]} offen
        """)
    A("L_end:\ns_endpgm")
    body, nn = A.finalize()
    nv = V.hi
    hdr = open('cdna_kernels/%s.s.ref' % NAME).read().split('; Override')[0]
    out = hdr + f"""; Generated by gen/gen1.py (hand-written generator). auto-nops: {nn}
; @launch grid=(256,1,1) block=(512,1,1) lds={LDS_BYTES}
.amdgcn_target "amdgcn-amd-amdhsa--gfx950"
.text
.globl {NAME}_kernel
.p2align 8
.type {NAME}_kernel,@function
{NAME}_kernel:
{body}.section .rodata,"a"
.p2align 6
.amdhsa_kernel {NAME}_kernel
  .amdhsa_next_free_vgpr {nv}
  .amdhsa_next_free_sgpr 102
  .amdhsa_accum_offset {(nv+3)//4*4}
  .amdhsa_group_segment_fixed_size 0
  .amdhsa_kernarg_size 64
  .amdhsa_user_sgpr_count 2
  .amdhsa_user_sgpr_kernarg_segment_ptr 1
  .amdhsa_system_sgpr_workgroup_id_x 1
.end_amdhsa_kernel
"""
    return out

if __name__ == '__main__':
    import argparse
    ap = argparse.ArgumentParser()
    ap.add_argument('-o', default='cdna_kernels/%s.s' % NAME)
    ap.add_argument('--stamps', action='store_true')
    a = ap.parse_args()
    open(a.o, 'w').write(gen(stamps=a.stamps))
    print('wrote', a.o)
```

```python
import sys, struct, math
from asmfw import *

NAME = "standalone__paged_block_table_kv_radixattention__decode"
KV_BYTES = 2560 * 32768
WS_BYTES = 335544320
ML_BASE = 4 << 20
STAMP_BASE = 8 << 20
def f2u(x): return struct.unpack('<I', struct.pack('<f', x))[0]
CSC = f2u(128 ** -0.5 * math.log2(math.e))
MASKV = 0xD3800000
NEGBIG = 0xFE800000
TBL = 131072
MINS = 147456
CNT = MINS + 64
LDS_BYTES = MINS + 128

def gen(stamps=False, ntk='nt', ntv='nt', prefetch=True, dry=True, gateT=2, sleep=8, dbgtime=False, tailstudy=False, noclear=False):
    A = Asm()
    V = Regs('v', 1, 256)
    S = Regs('s', 52, 102)
    pQ, pK, pV, pBT, pCTX, pOUT, pDBG, pWS = 4, 6, 8, 10, 12, 14, 16, 18
    srdK, srdV, srdQ, srdBT, srdWS, srdOUT, srdDBG = 20, 24, 28, 32, 36, 40, 44
    sCtx = 48
    sW, sHp, sSlot, sHl, sPart, sHead = [S.one() for _ in range(6)]
    sC = S.one(); sSelLo = S.one(); sSelHi = S.one()
    sN = S.one(); sI0 = S.one(); sKb = S.one()
    sE = [S.one() for _ in range(5)]
    sU0 = S.one(); sU1 = S.one(); sZq = S.one()
    t = [S.one() for _ in range(8)]
    mB = [S.rng(2) for _ in range(4)]
    pr = [4+2*i for i in range(8)]
    sSt = S.rng(2)
    sDry = S.one(); sSpin = S.one()
    srdC = S.rng(4)
    vLane, vG, vN = V.one(), V.one(), V.one()
    vKo = [V.one() for _ in range(4)]
    vVo = [V.one() for _ in range(2)]
    vKa = [V.one() for _ in range(4)]
    vSoff, vJ16, vPat, vCtx4g, vMaskV = [V.one() for _ in range(5)]
    vM, vL = V.one(), V.one()
    vStamp = V.one(); vFlags = V.one()
    tv = [V.one() for _ in range(8)]
    Q = V.rng(16, 4)
    O = V.rng(32, 4)
    KF = V.rng(32, 4)
    Sx = V.rng(8, 4)
    P = V.rng(4, 4)
    AT = V.rng(8, 4)
    VB = V.rng(64, 4)
    def stamp(k):
        if not stamps: return
        A(f"s_memrealtime {sr(sSt,2)}\ns_waitcnt lgkmcnt(0)\nv_writelane_b32 {vStamp}, {sr(sSt)}, {k}")

    A(f"""
    s_cmp_ge_u32 s2, 256
    s_cbranch_scc1 L_end
    s_load_dwordx16 s[4:19], s[0:1], 0
    """)
    if prefetch:
        A(f"""
        s_getpc_b64 {sr(srdC,2)}
        L_pc:
        v_lshlrev_b32 {tv[0]}, 4, v0
        s_mov_b32 {sr(srdC+2)}, L_codeend-L_pc
        s_mov_b32 {sr(srdC+3)}, 0x20000
        buffer_load_dwordx4 {vr(VB+60,4)}, {tv[0]}, {sr(srdC,4)}, 0 offen
        """)
    A(f"""
    v_and_b32 {vLane}, 63, v0
    v_lshrrev_b32 {tv[0]}, 6, v0
    v_lshrrev_b32 {vG}, 4, {vLane}
    v_readfirstlane_b32 {sW}, {tv[0]}
    v_and_b32 {vN}, 15, v0
    s_and_b32 {sHp}, s2, 3
    s_lshr_b32 {sSlot}, s2, 2
    s_and_b32 {sHl}, {sW}, 1
    s_lshr_b32 {sPart}, {sW}, 1
    s_lshl_b32 {sHead}, {sHp}, 1
    s_add_u32 {sHead}, {sHead}, {sHl}
    s_lshl_b32 {sKb}, {sW}, 14
    s_movk_i32 {t[0]}, 0x1000
    s_movk_i32 {t[1]}, 0x2000
    s_movk_i32 {t[2]}, 0x3000
    v_lshlrev_b32 {tv[0]}, 3, v0
    v_lshrrev_b32 {tv[2]}, 2, {vN}
    v_lshlrev_b32 {tv[1]}, 13, {tv[2]}
    v_and_b32 {tv[3]}, 3, {vN}
    v_lshl_add_u32 {tv[1]}, {tv[3]}, 8, {tv[1]}
    v_lshl_add_u32 {tv[1]}, {vG}, 4, {tv[1]}
    s_lshl_b32 {t[3]}, {sHead}, 10
    v_add_u32 {tv[1]}, {t[3]}, {tv[1]}
    s_movk_i32 s{srdBT+2}, 0x4000
    s_mov_b32 s{srdBT+3}, 0x20000
    s_mov_b32 s{srdQ+2}, 0x8000
    s_mov_b32 s{srdQ+3}, 0x20000
    s_waitcnt lgkmcnt(0)
    s_mov_b32 s{srdBT}, s{pBT}
    s_mov_b32 s{srdBT+1}, s{pBT+1}
    s_load_dwordx4 s[48:51], s[12:13], 0
    """)
    TB = KF
    A(f"buffer_load_dwordx2 {vr(TB,2)}, {tv[0]}, {sr(srdBT,4)}, 0 offen")
    for b in range(1, 4):
        A(f"buffer_load_dwordx2 {vr(TB+2*b,2)}, {tv[0]}, {sr(srdBT,4)}, {t[b-1]} offen")
    A(f"s_mov_b32 s{srdQ}, s{pQ}\ns_mov_b32 s{srdQ+1}, s{pQ+1}")
    for s in range(4):
        A(f"buffer_load_dwordx4 {vr(Q+4*s,4)}, {tv[1]}, {sr(srdQ,4)}, 0 offen offset:{64*s}")
    if stamps: A(f"v_mov_b32 {vStamp}, 0")
    stamp(0)
    for srd, p, n in ((srdWS, pWS, WS_BYTES), (srdK, pK, KV_BYTES), (srdV, pV, KV_BYTES), (srdOUT, pOUT, 32768), (srdDBG, pDBG, 256)):
        A(f"s_mov_b32 s{srd}, s{p}\ns_mov_b32 s{srd+1}, s{p+1}\ns_mov_b32 s{srd+2}, {n:#x}\ns_mov_b32 s{srd+3}, 0x20000")
    A(f"""
    s_cmp_lg_u32 {sW}, {9 if noclear else 0}
    s_cbranch_scc1 L_noclr
    v_mov_b32 {vr(AT)}, -1
    v_mov_b32 {vr(AT+1)}, -1
    v_mov_b32 {vr(AT+2)}, -1
    v_mov_b32 {vr(AT+3)}, -1
    v_lshlrev_b32 {tv[2]}, 4, {vLane}
    v_lshlrev_b32 {tv[3]}, 9, {vLane}
    s_lshl_b32 {t[3]}, {sHp}, 6
    s_add_u32 {t[3]}, {t[3]}, {sSlot}
    s_lshl_b32 {t[3]}, {t[3]}, 14
    s_mov_b32 {t[4]}, 4
    L_clr:
    buffer_store_dwordx4 {vr(AT,4)}, {tv[2]}, {sr(srdWS,4)}, {t[3]} offen sc1
    buffer_store_dwordx4 {vr(AT,4)}, {tv[2]}, {sr(srdWS,4)}, {t[3]} offen offset:1024 sc1
    buffer_store_dwordx4 {vr(AT,4)}, {tv[2]}, {sr(srdWS,4)}, {t[3]} offen offset:2048 sc1
    buffer_store_dwordx4 {vr(AT,4)}, {tv[2]}, {sr(srdWS,4)}, {t[3]} offen offset:3072 sc1
    s_add_u32 {t[3]}, {t[3]}, 0x1000
    s_sub_u32 {t[4]}, {t[4]}, 1
    s_cmp_lg_u32 {t[4]}, 0
    s_cbranch_scc1 L_clr
    s_lshl_b32 {t[3]}, {sHp}, 14
    s_lshl_b32 {t[4]}, {sSlot}, 3
    s_add_u32 {t[3]}, {t[3]}, {t[4]}
    s_add_u32 {t[3]}, {t[3]}, {ML_BASE:#x}
    s_mov_b64 exec, 0xffffffff
    s_mov_b32 exec_hi, 0
    buffer_store_dwordx2 {vr(AT,2)}, {tv[3]}, {sr(srdWS,4)}, {t[3]} offen sc1
    s_mov_b64 exec, -1
    L_noclr:
    """)
    A(f"""
    s_mov_b32 {sC}, {CSC:#x}
    s_mov_b32 {sSelLo}, 0x05040100
    s_mov_b32 {sSelHi}, 0x07060302
    s_lshl_b32 {t[3]}, {sHead}, 8
    """)
    for i in range(4):
        A(f"""
        v_add_u32 {tv[2]}, {4*i}, {vG}
        v_xor_b32 {tv[3]}, {tv[2]}, {vN}
        v_lshlrev_b32 {tv[3]}, 4, {tv[3]}
        v_lshl_add_u32 {vKo[i]}, {tv[2]}, 11, {tv[3]}
        v_add_u32 {vKo[i]}, {t[3]}, {vKo[i]}
        """)
        if i: A(f"v_subrev_u32 {vKo[i]}, {1024*i}, {vKo[i]}")
        A(f"""
        v_lshl_add_u32 {vKa[i]}, {vN}, 8, {tv[3]}
        v_add_u32 {vKa[i]}, {sKb}, {vKa[i]}
        """)
    A(f"""
    v_lshlrev_b32 {tv[2]}, 13, {vG}
    v_lshl_add_u32 {vVo[0]}, {vN}, 4, {tv[2]}
    v_add_u32 {vVo[0]}, {t[3]}, {vVo[0]}
    v_add_u32 {vVo[1]}, 0x1000, {vVo[0]}
    v_add_u32 {tv[4]}, {TBL:#x}, {tv[0]}
    s_lshl_b32 {t[5]}, {sW}, 2
    s_add_u32 {t[5]}, {t[5]}, {MINS:#x}
    v_mov_b32 {tv[5]}, {t[5]}
    v_mov_b32 {tv[6]}, {MINS:#x}
    v_mov_b32 {tv[7]}, 0
    ds_write_b32 {tv[6]}, {tv[7]} offset:64
    s_waitcnt lgkmcnt(0)
    s_mov_b32 {sZq}, 0
    """)
    for b in range(4):
        A(f"""
        s_cmp_lt_i32 s{sCtx+b}, 1
        s_cselect_b32 {t[4]}, {1<<b}, 0
        s_cselect_b32 s{sCtx+b}, 0x4000, s{sCtx+b}
        s_or_b32 {sZq}, {sZq}, {t[4]}
        s_min_u32 s{sCtx+b}, s{sCtx+b}, 0x4000
        s_add_u32 {sE[b+1]}, s{sCtx+b}, 15
        s_lshr_b32 {sE[b+1]}, {sE[b+1]}, 4
        """)
    A(f"""
    s_min_u32 {t[4]}, s{sCtx}, s{sCtx+1}
    s_min_u32 {t[5]}, s{sCtx+2}, s{sCtx+3}
    s_min_u32 {t[4]}, {t[4]}, {t[5]}
    s_lshr_b32 {t[4]}, {t[4]}, 4
    s_lshl_b32 {t[7]}, {sW}, 7
    v_lshlrev_b32 {vJ16}, 2, {vLane}
    v_add_u32 {vJ16}, {sPart}, {vJ16}
    s_cmp_eq_u32 {sW}, {9 if noclear else 0}
    s_cbranch_scc1 L_w7
    s_waitcnt vmcnt(4)
    s_branch L_tab
    L_w7:
    s_waitcnt vmcnt(21)
    L_tab:
    """)
    stamp(1)
    for e in range(2):
        A(f"""
        v_xor_b32 {tv[2]}, {vr(TB+e)}, {vr(TB+2+e)}
        v_xor_b32 {tv[3]}, {vr(TB+e)}, {vr(TB+4+e)}
        v_xor_b32 {tv[7]}, {vr(TB+e)}, {vr(TB+6+e)}
        v_or3_b32 {tv[2]}, {tv[2]}, {tv[3]}, {tv[7]}
        v_cmp_ne_u32 {sr(pr[e],2)}, 0, {tv[2]}
        """)
    for b in range(4):
        A(f"ds_write_b64 {tv[4]}, {vr(TB+2*b,2)} offset:{4096*b}")
    A(f"""
    s_ff1_i32_b64 {t[5]}, {sr(pr[0],2)}
    s_ff1_i32_b64 {t[6]}, {sr(pr[1],2)}
    s_lshl_b32 {t[5]}, {t[5]}, 1
    s_lshl_b32 {t[6]}, {t[6]}, 1
    s_or_b32 {t[6]}, {t[6]}, 1
    s_min_u32 {t[5]}, {t[5]}, {t[6]}
    s_cmp_lt_u32 {t[5]}, 128
    s_cselect_b32 {t[6]}, {t[7]}, 0x400
    s_cselect_b32 {t[5]}, {t[5]}, 0
    s_add_u32 {t[5]}, {t[5]}, {t[6]}
    v_mov_b32 {tv[2]}, {t[5]}
    ds_write_b32 {tv[5]}, {tv[2]}
    s_waitcnt lgkmcnt(0)
    s_barrier
    ds_read_b128 {vr(KF+8,4)}, {tv[6]}
    ds_read_b128 {vr(KF+12,4)}, {tv[6]} offset:16
    v_mov_b32 {vPat}, 0xffff
    v_mov_b32 {tv[4]}, 0xf0
    v_mov_b32 {tv[5]}, 0xf00
    v_mov_b32 {tv[6]}, 0xf000
    s_waitcnt lgkmcnt(0)
    v_min3_u32 {tv[2]}, {vr(KF+8)}, {vr(KF+9)}, {vr(KF+10)}
    v_min3_u32 {tv[7]}, {vr(KF+11)}, {vr(KF+12)}, {vr(KF+13)}
    v_min3_u32 {tv[2]}, {tv[2]}, {vr(KF+14)}, {vr(KF+15)}
    v_min_u32 {tv[2]}, {tv[2]}, {tv[7]}
    v_readfirstlane_b32 {sE[0]}, {tv[2]}
    s_min_u32 {sE[0]}, {sE[0]}, {t[4]}             ; Ps
    """)
    for b in range(4):
        A(f"s_sub_u32 {sE[b+1]}, {sE[b+1]}, {sE[0]}\ns_add_u32 {sE[b+1]}, {sE[b+1]}, {sE[b]}")
    A(f"""
    s_mul_i32 {sU0}, {sSlot}, {sE[4]}
    s_add_u32 {sU1}, {sU0}, {sE[4]}
    s_lshr_b32 {sU0}, {sU0}, 6
    s_lshr_b32 {sU1}, {sU1}, 6
    v_add_u32 {tv[3]}, {sU0}, {vJ16}              ; u
    """)
    for b in range(1, 4):
        A(f"s_sub_u32 {t[b-1]}, {sE[0]}, {sE[b]}\ns_add_u32 {t[b-1]}, {t[b-1]}, {1024*b}")
    A(f"""
    v_cmp_gt_u32 {sr(pr[1],2)}, {sE[1]}, {tv[3]}
    v_cmp_gt_u32 {sr(pr[2],2)}, {sE[2]}, {tv[3]}
    v_cmp_gt_u32 {sr(pr[3],2)}, {sE[3]}, {tv[3]}
    v_cmp_gt_u32 {sr(pr[4],2)}, {sU1}, {tv[3]}
    v_cmp_gt_u32 {sr(pr[0],2)}, {sE[0]}, {tv[3]}
    v_add_u32 {vr(KF)}, {t[0]}, {tv[3]}
    v_add_u32 {vr(KF+1)}, {t[1]}, {tv[3]}
    v_add_u32 {vr(KF+2)}, {t[2]}, {tv[3]}
    v_cndmask_b32 {tv[2]}, {vr(KF)}, {tv[3]}, {sr(pr[1],2)}
    v_cndmask_b32 {tv[2]}, {vr(KF+1)}, {tv[2]}, {sr(pr[2],2)}
    v_cndmask_b32 {tv[2]}, {vr(KF+2)}, {tv[2]}, {sr(pr[3],2)}
    v_cndmask_b32 {tv[2]}, 0, {tv[2]}, {sr(pr[4],2)}
    v_lshlrev_b32 {tv[7]}, 2, {tv[2]}
    v_add_u32 {tv[7]}, {TBL:#x}, {tv[7]}
    ds_read_b32 {vSoff}, {tv[7]}
    s_bcnt1_i32_b64 {sN}, {sr(pr[4],2)}
    v_cndmask_b32 {vPat}, 15, {vPat}, {sr(pr[0],2)}
    v_cndmask_b32 {vPat}, {tv[4]}, {vPat}, {sr(pr[1],2)}
    v_cndmask_b32 {vPat}, {tv[5]}, {vPat}, {sr(pr[2],2)}
    v_cndmask_b32 {vPat}, {tv[6]}, {vPat}, {sr(pr[3],2)}
    v_cndmask_b32 {vPat}, 0, {vPat}, {sr(pr[4],2)}
    v_and_b32 {vJ16}, 0x3ff, {tv[2]}
    v_lshlrev_b32 {vJ16}, 4, {vJ16}
    """)
    for k in range(4):
        A(f"s_cmp_gt_u32 {sN}, {k}\ns_cselect_b32 {t[4+k]}, {KV_BYTES:#x}, 0")
    A(f"""
    s_waitcnt lgkmcnt(0)
    v_min_u32 {vSoff}, 0x9ff, {vSoff}
    v_lshlrev_b32 {vSoff}, 15, {vSoff}
    """)
    for k in range(4):
        A(f"v_readlane_b32 {t[k]}, {vSoff}, {k}")
    A("s_nop 3")
    stamp(2)
    def issueK(par, offs, nrs):
        for x in range(2):
            A(f"s_add_u32 m0, {sKb}, {par*8192 + x*4096}\ns_mov_b32 s{srdK+2}, {nrs[x]}")
            for i in range(4):
                A(f"buffer_load_dwordx4 {vKo[i]}, {sr(srdK,4)}, {offs[x]} offen offset:{1024*i} {ntk} lds")
    def issueV(par, offs, nrs):
        for x in range(2):
            A(f"s_mov_b32 s{srdV+2}, {nrs[x]}")
            for j in range(4):
                A(f"buffer_load_dwordx4 {vr(VB+par*32+x*16+j*4,4)}, {vVo[j>>1]}, {sr(srdV,4)}, {offs[x]} offen offset:{2048*(j&1)} {ntv}")
    issueK(0, t[0:2], t[4:6]); issueV(0, t[0:2], t[4:6])
    issueK(1, t[2:4], t[6:8]); issueV(1, t[2:4], t[6:8])
    stamp(3)
    A(f"""
    v_mov_b32 {vMaskV}, {MASKV:#x}
    v_mov_b32 {vL}, 0
    v_mul_f32 {vM}, {sC}, {vMaskV}
    """)
    for i in range(32):
        A(f"v_mov_b32 {vr(O+i)}, 0")
    A(f"""
    v_lshrrev_b32 {tv[2]}, 2, {vN}
    v_mov_b32 {vCtx4g}, s{sCtx}
    v_mov_b32 {tv[3]}, s{sCtx+1}
    v_mov_b32 {tv[4]}, s{sCtx+2}
    v_mov_b32 {tv[5]}, s{sCtx+3}
    v_cmp_eq_u32 {sr(pr[0],2)}, 1, {tv[2]}
    v_cmp_eq_u32 {sr(pr[1],2)}, 2, {tv[2]}
    v_cmp_eq_u32 {sr(pr[2],2)}, 3, {tv[2]}
    v_lshlrev_b32 {tv[6]}, 2, {vG}
    v_cndmask_b32 {vCtx4g}, {vCtx4g}, {tv[3]}, {sr(pr[0],2)}
    v_cndmask_b32 {vCtx4g}, {vCtx4g}, {tv[4]}, {sr(pr[1],2)}
    v_cndmask_b32 {vCtx4g}, {vCtx4g}, {tv[5]}, {sr(pr[2],2)}
    v_sub_u32 {vCtx4g}, {vCtx4g}, {tv[6]}
    v_mul_u32_u24 {tv[2]}, {sE[4]}, {vLane}
    v_add_u32 {tv[3]}, {sE[4]}, {tv[2]}
    v_lshrrev_b32 {tv[2]}, 6, {tv[2]}              ; st
    v_lshrrev_b32 {tv[3]}, 6, {tv[3]}              ; en
    v_cmp_lt_u32 {sr(pr[0],2)}, {tv[2]}, {tv[3]}   ; nonempty
    v_cmp_gt_u32 {sr(pr[1],2)}, {sE[0]}, {tv[2]}
    """)
    for b in range(4):
        A(f"""
        v_cmp_gt_u32 {sr(pr[2],2)}, {sE[b+1]}, {tv[2]}
        v_cmp_lt_u32 {sr(pr[3],2)}, {sE[b]}, {tv[3]}
        s_and_b64 {sr(pr[2],2)}, {sr(pr[2],2)}, {sr(pr[3],2)}
        s_or_b64 {sr(pr[2],2)}, {sr(pr[2],2)}, {sr(pr[1],2)}
        s_and_b64 {sr(mB[b],2)}, {sr(pr[2],2)}, {sr(pr[0],2)}
        """)
    A(f"""
    s_waitcnt vmcnt(32)
    s_cmp_lg_u32 {sW}, 0
    s_cbranch_scc1 L_noflag
    s_lshl_b32 {sr(pr[0])}, {sHp}, 6
    s_add_u32 {sr(pr[0])}, {sr(pr[0])}, {sSlot}
    v_mov_b32 {tv[2]}, {sr(pr[0])}
    v_mov_b32 {tv[3]}, 1
    s_mov_b64 exec, 1
    buffer_store_byte {tv[3]}, {tv[2]}, {sr(srdDBG,4)}, 0 offen sc1
    s_mov_b64 exec, -1
    L_noflag:
    s_cmp_eq_u32 {sZq}, 0
    s_cbranch_scc1 L_noz
    v_lshrrev_b32 {tv[2]}, 2, {vN}
    v_mov_b32 {tv[3]}, {sZq}
    v_lshrrev_b32 {tv[2]}, {tv[2]}, {tv[3]}
    v_and_b32 {tv[2]}, 1, {tv[2]}
    v_cmp_eq_u32 vcc, 0, {tv[2]}
    """)
    for i in range(16):
        A(f"v_cndmask_b32 {vr(Q+i)}, 0, {vr(Q+i)}, vcc")
    A("s_nop 1\nL_noz:")
    A(f"""
    s_mov_b32 {sI0}, 0
    s_cmp_eq_u32 {sN}, 0
    s_cbranch_scc1 L_loopdone
    L_loop:
    """)
    sOffA, sOffB, sNrA, sNrB, sJ0, sJ1, sP0, sP1 = t
    def tile(par):
        S0, S1 = Sx, Sx + 4
        A(f"""
        s_add_u32 {sNrA}, {sI0}, 4
        s_add_u32 {sNrB}, {sI0}, 5
        s_add_u32 {sP1}, {sI0}, 1
        v_readlane_b32 {sOffA}, {vSoff}, {sNrA}
        v_readlane_b32 {sOffB}, {vSoff}, {sNrB}
        v_readlane_b32 {sJ0}, {vJ16}, {sI0}
        v_readlane_b32 {sJ1}, {vJ16}, {sP1}
        v_readlane_b32 {sP0}, {vPat}, {sI0}
        v_readlane_b32 {sP1}, {vPat}, {sP1}
        s_cmp_lt_u32 {sNrA}, {sN}
        s_cselect_b32 {sNrA}, {KV_BYTES:#x}, 0
        s_cmp_lt_u32 {sNrB}, {sN}
        s_cselect_b32 {sNrB}, {KV_BYTES:#x}, 0
        s_mul_i32 {sr(pr[0])}, {sP0}, 0x10001
        s_mul_i32 {sr(pr[1])}, {sP1}, 0x10001
        s_mov_b32 {sr(pr[0]+1)}, {sr(pr[0])}
        s_mov_b32 {sr(pr[1]+1)}, {sr(pr[1])}
        v_subrev_u32 {tv[0]}, {sJ0}, {vCtx4g}
        v_subrev_u32 {tv[1]}, {sJ1}, {vCtx4g}
        v_cndmask_b32 {tv[0]}, 0, {tv[0]}, {sr(pr[0],2)}
        v_cndmask_b32 {tv[1]}, 0, {tv[1]}, {sr(pr[1],2)}
        s_waitcnt vmcnt(24)
        """)
        for x in range(2):
            for s in range(4):
                A(f"ds_read_b128 {vr(KF+x*16+s*4,4)}, {vKa[s]} offset:{par*8192+x*4096}")
        for x in range(2):
            for r in range(4):
                A(f"v_cmp_lt_i32 {sr(pr[x*4+r],2)}, {r}, {tv[x]}")
        for x in range(2):
            A(f"s_waitcnt lgkmcnt({4*(1-x)})")
            for s in range(4):
                c = '0' if s == 0 else vr(Sx+4*x, 4)
                A(f"v_mfma_f32_16x16x32_bf16 {vr(Sx+4*x,4)}, {vr(KF+x*16+s*4,4)}, {vr(Q+4*s,4)}, {c}")
        issueK(par, (sOffA, sOffB), (sNrA, sNrB))
        for x in range(2):
            for r in range(4):
                A(f"v_cndmask_b32 {vr(Sx+4*x+r)}, {vMaskV}, {vr(Sx+4*x+r)}, {sr(pr[x*4+r],2)}")
        A(f"""
        v_max3_f32 {tv[0]}, {vr(S0)}, {vr(S0+1)}, {vr(S0+2)}
        v_max3_f32 {tv[1]}, {vr(S0+3)}, {vr(S1)}, {vr(S1+1)}
        v_max3_f32 {tv[0]}, {tv[0]}, {vr(S1+2)}, {vr(S1+3)}
        v_max_f32 {tv[0]}, {tv[0]}, {tv[1]}
        v_mov_b32 {tv[1]}, {tv[0]}
        v_permlane32_swap_b32 {tv[0]}, {tv[1]}
        v_max_f32 {tv[0]}, {tv[0]}, {tv[1]}
        v_mov_b32 {tv[1]}, {tv[0]}
        v_permlane16_swap_b32 {tv[0]}, {tv[1]}
        v_max_f32 {tv[0]}, {tv[0]}, {tv[1]}
        v_mul_f32 {tv[0]}, {sC}, {tv[0]}
        v_max_f32 {tv[0]}, {tv[0]}, {vM}            ; mnew
        v_sub_f32 {tv[1]}, {vM}, {tv[0]}
        v_mov_b32 {vM}, {tv[0]}
        v_exp_f32 {tv[1]}, {tv[1]}                  ; alpha
        """)
        for i in range(8):
            A(f"v_fma_f32 {vr(Sx+i)}, {vr(Sx+i)}, {sC}, -{tv[0]}")
        for i in range(8):
            A(f"v_exp_f32 {vr(Sx+i)}, {vr(Sx+i)}")
        A(f"v_cmp_neq_f32 vcc, 1.0, {tv[1]}")
        A(f"""
        v_add_f32 {tv[2]}, {vr(Sx)}, {vr(Sx+1)}
        v_add_f32 {tv[3]}, {vr(Sx+2)}, {vr(Sx+3)}
        v_add_f32 {tv[4]}, {vr(Sx+4)}, {vr(Sx+5)}
        v_add_f32 {tv[5]}, {vr(Sx+6)}, {vr(Sx+7)}
        v_add_f32 {tv[2]}, {tv[2]}, {tv[3]}
        v_add_f32 {tv[4]}, {tv[4]}, {tv[5]}
        v_add_f32 {tv[2]}, {tv[2]}, {tv[4]}
        v_fma_f32 {vL}, {vL}, {tv[1]}, {tv[2]}
        """)
        for i in range(4):
            A(f"v_cvt_pk_bf16_f32 {vr(P+i)}, {vr(Sx+2*i)}, {vr(Sx+2*i+1)}")
        A(f"s_cbranch_vccz L_nors{par}")
        for i in range(32):
            A(f"v_mul_f32 {vr(O+i)}, {tv[1]}, {vr(O+i)}")
        A(f"L_nors{par}:\ns_waitcnt vmcnt(24)")
        vb = VB + par * 32
        def perms(d):
            sel = sSelHi if d & 1 else sSelLo
            m = d >> 1
            for jj in range(4):
                x, j0 = jj >> 1, (jj & 1) * 2
                lo = vb + x*16 + j0*4 + m
                hi = vb + x*16 + (j0+1)*4 + m
                A(f"v_perm_b32 {vr(AT+(d&1)*4+jj)}, {vr(hi)}, {vr(lo)}, {sel}")
        perms(0)
        for d in range(8):
            if d < 7: perms(d+1)
            A(f"v_mfma_f32_16x16x32_bf16 {vr(O+4*d,4)}, {vr(AT+(d&1)*4,4)}, {vr(P,4)}, {vr(O+4*d,4)}")
        issueV(par, (sOffA, sOffB), (sNrA, sNrB))
        A(f"s_add_u32 {sI0}, {sI0}, 2\ns_cmp_lt_u32 {sI0}, {sN}")
    tile(0)
    A("s_cbranch_scc0 L_loopdone")
    tile(1)
    A("s_cbranch_scc1 L_loop")
    A("L_loopdone:")
    stamp(4)
    A(f"""
    v_mov_b32 {tv[1]}, {vL}
    v_and_b32 {tv[2]}, 7, {vN}
    v_xor_b32 {tv[2]}, {tv[2]}, {vG}              ; (g ^ (n&7))
    v_permlane32_swap_b32 {vL}, {tv[1]}
    v_add_f32 {vL}, {vL}, {tv[1]}
    v_lshlrev_b32 {tv[3]}, 9, {vN}
    v_lshl_add_u32 {tv[3]}, {tv[2]}, 4, {tv[3]}
    v_mov_b32 {tv[1]}, {vL}
    v_add_u32 {tv[3]}, {sKb}, {tv[3]}             ; even d
    v_xor_b32 {tv[5]}, 64, {tv[3]}                ; odd d
    v_permlane16_swap_b32 {vL}, {tv[1]}
    v_add_f32 {vr(P+1)}, {vL}, {tv[1]}
    v_mov_b32 {vr(P)}, {vM}
    v_and_b32 {tv[0]}, 12, {vN}
    v_and_b32 {tv[1]}, 1, {vN}
    v_lshl_add_u32 {tv[0]}, {tv[1]}, 1, {tv[0]}
    v_bfe_u32 {tv[1]}, {vN}, 1, 1
    v_add_u32 {tv[0]}, {tv[0]}, {tv[1]}
    v_lshlrev_b32 {tv[4]}, 3, {tv[0]}
    v_add_u32 {tv[4]}, {sKb}, {tv[4]}
    v_mov_b32 {tv[6]}, {CNT:#x}
    v_mov_b32 {tv[7]}, 1
    s_waitcnt vmcnt(0)
    """)
    for d in range(8):
        A(f"ds_write_b128 {tv[5] if d&1 else tv[3]}, {vr(O+4*d,4)} offset:{128*(d>>1)}")
    A(f"ds_write_b64 {tv[4]}, {vr(P,2)} offset:8192")
    A(f"""
    s_mov_b64 exec, 1
    ds_add_rtn_u32 {tv[7]}, {tv[6]}, {tv[7]}
    s_mov_b64 exec, -1
    s_waitcnt lgkmcnt(0)
    v_readfirstlane_b32 {sDry}, {tv[7]}
    s_cmp_eq_u32 {sDry}, 0
    s_cselect_b32 {sDry}, 1, 0
    s_cbranch_scc1 L_post
    L_bar:
    s_barrier
    L_post:
    """)
    stamp(5)
    ML = KF
    R = VB
    A(f"""
    s_cmp_eq_u32 {sPart}, 0
    s_cselect_b64 {sr(pr[0],2)}, {sr(mB[0],2)}, {sr(mB[1],2)}
    s_cmp_eq_u32 {sPart}, 2
    s_cselect_b64 {sr(pr[0],2)}, {sr(mB[2],2)}, {sr(pr[0],2)}
    s_cmp_eq_u32 {sPart}, 3
    s_cselect_b64 {sr(pr[0],2)}, {sr(mB[3],2)}, {sr(pr[0],2)}
    s_bitcmp1_b64 {sr(pr[0],2)}, {sSlot}
    s_cselect_b32 {t[3]}, 1, {sDry}
    s_cmp_eq_u32 {t[3]}, 0
    s_cbranch_scc1 L_nostore
    s_lshl_b32 {t[0]}, {sHl}, 14
    s_lshl_b32 {t[1]}, {sPart}, 11
    s_lshl_b32 {t[2]}, {sPart}, 5
    s_add_u32 {t[1]}, {t[1]}, {t[0]}               ; hl*16384 + b*2048
    s_add_u32 {t[2]}, {t[2]}, {t[0]}               ; hl*16384 + b*32
    s_and_b32 {t[0]}, {sPart}, 1
    s_lshl_b32 {t[0]}, {t[0]}, 2                   ; (4b)&7
    v_lshrrev_b32 {tv[0]}, 5, {vLane}              ; r2
    v_and_b32 {tv[1]}, 31, {vLane}                 ; q
    v_lshl_add_u32 {tv[4]}, {tv[0]}, 4, {t[2]}
    v_add_u32 {tv[6]}, {t[0]}, {tv[0]}             ; n&7 for i=0
    v_add_u32 {tv[5]}, 0x10000, {tv[4]}
    v_xor_b32 {tv[6]}, {tv[6]}, {tv[1]}
    v_lshlrev_b32 {tv[6]}, 4, {tv[6]}
    v_lshl_add_u32 {tv[6]}, {tv[0]}, 9, {tv[6]}
    v_add_u32 {tv[2]}, {t[1]}, {tv[6]}             ; i=0 rows
    """)
    for p in range(4):
        A(f"ds_read_b128 {vr(ML+4*p,4)}, {tv[4+(p>>1)]} offset:{8192+(p&1)*32768}")
    A(f"""
    v_xor_b32 {tv[3]}, 32, {tv[2]}
    v_add_u32 {tv[6]}, 0x10000, {tv[2]}
    v_add_u32 {tv[7]}, 0x10000, {tv[3]}
    """)
    for p in range(4):
        for i in range(2):
            ad = (tv[2], tv[3], tv[6], tv[7])[(p>>1)*2+i]
            A(f"ds_read_b128 {vr(R+p*8+i*4,4)}, {ad} offset:{(p&1)*32768+i*1024}")
    A(f"""
    v_lshlrev_b32 {tv[6]}, 4, {vLane}
    v_lshlrev_b32 {tv[7]}, 9, {tv[0]}
    v_lshl_add_u32 {tv[7]}, {tv[1]}, 10, {tv[7]}
    v_cmp_eq_u32 vcc, 1, {tv[1]}
    s_lshl_b32 {t[0]}, {sHp}, 6
    s_add_u32 {t[0]}, {t[0]}, {sSlot}
    s_lshl_b32 {t[0]}, {t[0]}, 14
    s_lshl_b32 {t[2]}, {sHl}, 11
    s_lshl_b32 {t[1]}, {sPart}, 12
    s_add_u32 {t[2]}, {t[2]}, {t[1]}               ; b*4096 + hl*2048
    s_add_u32 {t[0]}, {t[0]}, {t[2]}
    s_lshl_b32 {t[1]}, {sHp}, 14
    s_add_u32 {t[1]}, {t[1]}, {t[2]}
    s_lshl_b32 {t[2]}, {sSlot}, 3
    s_add_u32 {t[1]}, {t[1]}, {t[2]}
    s_add_u32 {t[1]}, {t[1]}, {ML_BASE:#x}
    s_mov_b32 {t[4]}, -2
    s_waitcnt lgkmcnt(8)
    """)
    for i in range(2):
        A(f"""
        v_max3_f32 {tv[2+i]}, {vr(ML+2*i)}, {vr(ML+4+2*i)}, {vr(ML+8+2*i)}
        v_max_f32 {tv[2+i]}, {tv[2+i]}, {vr(ML+12+2*i)}
        """)
    for p in range(4):
        for i in range(2):
            A(f"v_sub_f32 {vr(ML+4*p+2*i)}, {vr(ML+4*p+2*i)}, {tv[2+i]}")
    for p in range(4):
        for i in range(2):
            A(f"v_exp_f32 {vr(ML+4*p+2*i)}, {vr(ML+4*p+2*i)}")
    A("s_waitcnt lgkmcnt(6)")
    for i in range(2):
        for r in range(4):
            A(f"v_mul_f32 {vr(O+4*i+r)}, {vr(ML+2*i)}, {vr(R+4*i+r)}")
    for p in range(1, 4):
        A(f"s_waitcnt lgkmcnt({6-2*p})")
        for i in range(2):
            for r in range(4):
                A(f"v_fmac_f32 {vr(O+4*i+r)}, {vr(ML+4*p+2*i)}, {vr(R+p*8+4*i+r)}")
    for i in range(8):
        A(f"v_min_u32 {vr(O+i)}, {t[4]}, {vr(O+i)}")
    A(f"""
    s_cmp_lg_u32 {sDry}, 0
    s_cbranch_scc1 L_skst
    buffer_store_dwordx4 {vr(O,4)}, {tv[6]}, {sr(srdWS,4)}, {t[0]} offen sc1
    buffer_store_dwordx4 {vr(O+4,4)}, {tv[6]}, {sr(srdWS,4)}, {t[0]} offen offset:1024 sc1
    L_skst:
    """)
    for i in range(2):
        A(f"v_mul_f32 {tv[4+i]}, {vr(ML+2*i)}, {vr(ML+2*i+1)}")
    for p in range(1, 4):
        for i in range(2):
            A(f"v_fmac_f32 {tv[4+i]}, {vr(ML+4*p+2*i)}, {vr(ML+4*p+2*i+1)}")
    A(f"""
    v_cndmask_b32 {vr(P)}, {tv[2]}, {tv[3]}, vcc
    v_cndmask_b32 {vr(P+1)}, {tv[4]}, {tv[5]}, vcc
    v_min_u32 {vr(P)}, {t[4]}, {vr(P)}
    v_min_u32 {vr(P+1)}, {t[4]}, {vr(P+1)}
    s_cbranch_scc1 L_nostore
    s_mov_b32 exec_lo, 3
    s_mov_b32 exec_hi, 3
    buffer_store_dwordx2 {vr(P,2)}, {tv[7]}, {sr(srdWS,4)}, {t[1]} offen sc1
    s_mov_b64 exec, -1
    L_nostore:
    """)
    stamp(6)
    mS = pr[0]; Pk = [pr[1], pr[2], pr[3], pr[4]]; Qk = [srdQ, srdQ+2, srdBT, srdBT+2]; gate = pr[6]; tmp = pr[7]; tmp2 = pr[5]
    RO = VB + 32
    RM = KF + 16
    sB = sI0
    A(f"""
    s_and_b32 {t[0]}, {sSlot}, 1
    s_or_b32 {t[0]}, {t[0]}, {sDry}
    s_cbranch_scc0 L_fin
    s_lshr_b32 {sB}, {sSlot}, 4
    s_cmp_eq_u32 {sB}, 0
    s_cselect_b64 {sr(mS,2)}, {sr(mB[0],2)}, {sr(mB[1],2)}
    s_cmp_eq_u32 {sB}, 2
    s_cselect_b64 {sr(mS,2)}, {sr(mB[2],2)}, {sr(mS,2)}
    s_cmp_eq_u32 {sB}, 3
    s_cselect_b64 {sr(mS,2)}, {sr(mB[3],2)}, {sr(mS,2)}
    s_mov_b32 {sSpin}, 0x40000
    s_cmp_eq_u32 {sDry}, 0
    s_cbranch_scc1 L_flgok
    s_lshl_b32 {sr(tmp)}, {sHp}, 6
    L_flg:
    buffer_load_ubyte {vFlags}, {vLane}, {sr(srdDBG,4)}, {sr(tmp)} offen sc1
    s_waitcnt vmcnt(0)
    v_cmp_eq_u32 vcc, 0, {vFlags}
    s_and_b64 vcc, vcc, {sr(mS,2)}
    s_cbranch_vccz L_flgz
    s_sleep 8
    s_sub_u32 {sSpin}, {sSpin}, 1
    s_cmp_lg_u32 {sSpin}, 0
    s_cbranch_scc1 L_flg
    L_flgz:
    s_mov_b64 {sr(mS,2)}, 0
    L_flgok:
    s_lshr_b32 {t[0]}, {sSlot}, 1
    s_lshl_b32 {t[0]}, {t[0]}, 9                   ; row32*512
    s_lshl_b32 {t[1]}, {sHp}, 14
    s_add_u32 {t[1]}, {t[1]}, {t[0]}
    s_add_u32 {t[1]}, {t[1]}, {ML_BASE:#x}
    s_lshl_b32 {t[3]}, {sW}, 6
    s_add_u32 {t[4]}, {t[0]}, {t[3]}
    s_lshl_b32 {t[3]}, {sHp}, 20
    s_add_u32 {t[4]}, {t[4]}, {t[3]}               ; O soffset k=0
    s_add_u32 {t[5]}, {t[4]}, 0x40000
    s_add_u32 {t[6]}, {t[4]}, 0x80000
    s_add_u32 {t[7]}, {t[4]}, 0xc0000
    v_lshrrev_b32 {tv[0]}, 2, {vLane}
    v_and_b32 {tv[1]}, 3, {vLane}
    v_lshlrev_b32 {tv[2]}, 14, {tv[0]}
    v_lshl_add_u32 {tv[2]}, {tv[1]}, 4, {tv[2]}    ; O voffset
    v_lshlrev_b32 {tv[3]}, 3, {tv[0]}
    v_lshrrev_b32 {tv[4]}, {tv[0]}, {sr(mS)}
    v_lshrrev_b32 {tv[5]}, {tv[0]}, {sr(mS+1)}
    v_and_b32 {tv[6]}, 1, {tv[4]}
    v_and_b32 {tv[4]}, 0x10000, {tv[4]}
    v_and_b32 {tv[7]}, 1, {tv[5]}
    v_and_b32 {tv[5]}, 0x10000, {tv[5]}
    v_cmp_ne_u32 {sr(Pk[0],2)}, 0, {tv[6]}
    v_cmp_ne_u32 {sr(Pk[1],2)}, 0, {tv[4]}
    v_cmp_ne_u32 {sr(Pk[2],2)}, 0, {tv[7]}
    v_cmp_ne_u32 {sr(Pk[3],2)}, 0, {tv[5]}
    s_mov_b64 {sr(gate,2)}, -1
    """)
    for k in range(4):
        A(f"v_mov_b32 {vr(RM+2*k)}, {NEGBIG:#x}\nv_mov_b32 {vr(RM+2*k+1)}, 0")
    for k in range(4):
        for i in range(4):
            A(f"v_cndmask_b32 {vr(RO+4*k+i)}, 0, -1, {sr(Pk[k],2)}")
    A("L_sw:")
    for k in range(4):
        A(f"""
        s_mov_b64 exec, {sr(Pk[k],2)}
        s_cbranch_execz L_sk{k}
        buffer_load_dwordx2 {vr(RM+2*k,2)}, {tv[3]}, {sr(srdWS,4)}, {t[1]} offen offset:{128*k} sc1
        s_orn2_b64 {sr(tmp,2)}, {sr(gate,2)}, {sr(Qk[k],2)}
        s_and_b64 exec, exec, {sr(tmp,2)}
        s_cbranch_execz L_sk{k}
        buffer_load_dwordx4 {vr(RO+4*k,4)}, {tv[2]}, {sr(srdWS,4)}, {t[4+k]} offen sc1
        L_sk{k}:
        """)
    A(f"s_mov_b64 exec, -1\ns_mov_b32 {t[0]}, 0\ns_waitcnt vmcnt(0)")
    if stamps and tailstudy:
        A(f"s_cmp_lg_u32 {sSpin}, 0x40000\ns_cbranch_scc1 L_ns2")
        stamp(2)
        A("L_ns2:")
    for k in range(4):
        A(f"""
        v_max_u32 {tv[4]}, {vr(RM+2*k)}, {vr(RM+2*k+1)}
        v_max3_u32 {tv[5]}, {vr(RO+4*k)}, {vr(RO+4*k+1)}, {vr(RO+4*k+2)}
        v_cmp_eq_u32 {sr(Qk[k],2)}, -1, {tv[4]}
        v_max3_u32 {tv[5]}, {tv[5]}, {vr(RO+4*k+3)}, {tv[4]}
        v_cmp_eq_u32 {sr(Pk[k],2)}, -1, {tv[5]}
        s_bcnt1_i32_b64 {t[3]}, {sr(Qk[k],2)}
        s_add_u32 {t[0]}, {t[0]}, {t[3]}
        """)
    A(f"""
    s_or_b64 {sr(tmp,2)}, {sr(Pk[0],2)}, {sr(Pk[1],2)}
    s_or_b64 {sr(tmp2,2)}, {sr(Pk[2],2)}, {sr(Pk[3],2)}
    s_or_b64 {sr(tmp,2)}, {sr(tmp,2)}, {sr(tmp2,2)}
    s_cbranch_scc0 L_done
    s_sub_u32 {sSpin}, {sSpin}, 1
    s_cmp_eq_u32 {sSpin}, 0
    s_cbranch_scc1 L_done
    s_cmp_le_u32 {t[0]}, {4*gateT}
    s_cselect_b64 {sr(gate,2)}, -1, 0
    s_cbranch_scc1 L_sw
    s_sleep {sleep}
    s_branch L_sw
    L_done:
    """)
    if stamps and tailstudy:
        stamp(3)
        A(f"s_sub_u32 {sr(sSt)}, 0x40000, {sSpin}\nv_writelane_b32 {vStamp}, {sr(sSt)}, 1")
    A(f"""
    v_max3_f32 {tv[4]}, {vr(RM)}, {vr(RM+2)}, {vr(RM+4)}
    v_max_f32 {tv[4]}, {tv[4]}, {vr(RM+6)}
    v_lshlrev_b32 {tv[0]}, 5, {tv[1]}
    v_max_f32_dpp {tv[4]}, {tv[4]}, {tv[4]} row_ror:4 row_mask:0xf bank_mask:0xf
    v_lshl_add_u32 {tv[0]}, {vG}, 3, {tv[0]}
    v_add_u32 {tv[0]}, {sW}, {tv[0]}
    v_max_f32_dpp {tv[4]}, {tv[4]}, {tv[4]} row_ror:8 row_mask:0xf bank_mask:0xf
    v_lshlrev_b32 {tv[0]}, 1, {tv[0]}
    v_mov_b32 {tv[5]}, {tv[4]}
    v_permlane16_swap_b32 {tv[4]}, {tv[5]}
    v_max_f32 {tv[4]}, {tv[4]}, {tv[5]}
    v_mov_b32 {tv[5]}, {tv[4]}
    v_permlane32_swap_b32 {tv[4]}, {tv[5]}
    v_max_f32 {tv[4]}, {tv[4]}, {tv[5]}
    """)
    for k in range(4):
        A(f"v_sub_f32 {vr(RM+2*k)}, {vr(RM+2*k)}, {tv[4]}")
    for k in range(4):
        A(f"v_exp_f32 {vr(RM+2*k)}, {vr(RM+2*k)}")
    A(f"v_mul_f32 {tv[4]}, {vr(RM)}, {vr(RM+1)}")
    for i in range(4):
        A(f"v_mul_f32 {vr(O+i)}, {vr(RM)}, {vr(RO+i)}")
    for k in range(1, 4):
        A(f"v_fmac_f32 {tv[4]}, {vr(RM+2*k)}, {vr(RM+2*k+1)}")
        for i in range(4):
            A(f"v_fmac_f32 {vr(O+i)}, {vr(RM+2*k)}, {vr(RO+4*k+i)}")
    A(f"""
    v_mov_b32 {tv[5]}, {tv[4]}
    s_lshl_b32 {t[0]}, {sB}, 5
    s_lshl_b32 {t[1]}, {sHp}, 3
    v_permlane32_swap_b32 {vr(O)}, {vr(O+2)}
    v_permlane32_swap_b32 {vr(O+1)}, {vr(O+3)}
    v_permlane32_swap_b32 {tv[4]}, {tv[5]}
    v_add_f32 {vr(O)}, {vr(O)}, {vr(O+2)}
    v_add_f32 {vr(O+1)}, {vr(O+1)}, {vr(O+3)}
    v_add_f32 {tv[4]}, {tv[4]}, {tv[5]}
    s_add_u32 {t[0]}, {t[0]}, {t[1]}
    v_mov_b32 {tv[5]}, {tv[4]}
    s_lshr_b32 {t[1]}, {sSlot}, 1
    v_permlane16_swap_b32 {vr(O)}, {vr(O+1)}
    v_permlane16_swap_b32 {tv[4]}, {tv[5]}
    v_add_f32 {vr(O)}, {vr(O)}, {vr(O+1)}
    v_add_f32 {tv[4]}, {tv[4]}, {tv[5]}
    s_and_b32 {t[1]}, {t[1]}, 7
    s_add_u32 {t[0]}, {t[0]}, {t[1]}
    v_add_f32_dpp {vr(O)}, {vr(O)}, {vr(O)} row_ror:4 row_mask:0xf bank_mask:0xf
    v_add_f32_dpp {tv[4]}, {tv[4]}, {tv[4]} row_ror:4 row_mask:0xf bank_mask:0xf
    s_lshl_b32 {t[0]}, {t[0]}, 8
    s_mov_b32 {sr(tmp)}, 0x000f000f
    v_add_f32_dpp {vr(O)}, {vr(O)}, {vr(O)} row_ror:8 row_mask:0xf bank_mask:0xf
    v_add_f32_dpp {tv[4]}, {tv[4]}, {tv[4]} row_ror:8 row_mask:0xf bank_mask:0xf
    s_mov_b32 {sr(tmp+1)}, {sr(tmp)}
    v_rcp_f32 {tv[4]}, {tv[4]}
    s_cmp_lg_u32 {sDry}, 0
    v_mul_f32 {vr(O)}, {vr(O)}, {tv[4]}
    v_cvt_pk_bf16_f32 {tv[5]}, {vr(O)}, {vr(O)}
    s_mov_b32 {sDry}, 0
    s_cbranch_scc1 L_bar
    s_mov_b64 exec, {sr(tmp,2)}
    buffer_store_short {tv[5]}, {tv[0]}, {sr(srdOUT,4)}, {t[0]} offen
    L_fin:
    """)
    if stamps:
        A("s_mov_b64 exec, -1\ns_waitcnt vmcnt(0)")
        stamp(7)
        A(f"""
        s_lshl_b32 {t[0]}, s2, 3
        s_add_u32 {t[0]}, {t[0]}, {sW}
        s_lshl_b32 {t[0]}, {t[0]}, 5
        s_add_u32 {t[0]}, {t[0]}, {STAMP_BASE:#x}
        v_lshlrev_b32 {tv[0]}, 2, {vLane}
        s_mov_b64 exec, 0xff
        buffer_store_dword {vStamp}, {tv[0]}, {sr(srdWS,4)}, {t[0]} offen
        """)
    A("L_end:\ns_endpgm\nL_codeend:")
    body, nn = A.finalize()
    nv = V.hi
    hdr = open('cdna_kernels/%s.s.ref' % NAME).read().split('; Override')[0]
    out = hdr + f"""; Generated by gen/gen3.py (hand-written generator). auto-nops: {nn}
; @launch grid=(256,1,1) block=(512,1,1) lds={LDS_BYTES}
.amdgcn_target "amdgcn-amd-amdhsa--gfx950"
.text
.globl {NAME}_kernel
.p2align 8
.type {NAME}_kernel,@function
{NAME}_kernel:
{body}.section .rodata,"a"
.p2align 6
.amdhsa_kernel {NAME}_kernel
  .amdhsa_next_free_vgpr {nv}
  .amdhsa_next_free_sgpr 102
  .amdhsa_accum_offset {(nv+3)//4*4}
  .amdhsa_group_segment_fixed_size 0
  .amdhsa_kernarg_size 64
  .amdhsa_user_sgpr_count 2
  .amdhsa_user_sgpr_kernarg_segment_ptr 1
  .amdhsa_system_sgpr_workgroup_id_x 1
.end_amdhsa_kernel
"""
    return out

if __name__ == '__main__':
    import argparse
    ap = argparse.ArgumentParser()
    ap.add_argument('-o', default='cdna_kernels/%s.s' % NAME)
    ap.add_argument('--stamps', action='store_true')
    ap.add_argument('--noprefetch', action='store_true')
    ap.add_argument('--nodry', action='store_true')
    ap.add_argument('--gate', type=int, default=2)
    ap.add_argument('--sleep', type=int, default=8)
    ap.add_argument('--tail', action='store_true')
    ap.add_argument('--noclear', action='store_true')
    a = ap.parse_args()
    open(a.o, 'w').write(gen(stamps=a.stamps, prefetch=not a.noprefetch, dry=not a.nodry, gateT=a.gate, sleep=a.sleep, tailstudy=a.tail, noclear=a.noclear))
    print('wrote', a.o)
```

```python
import sys, struct, math
from asmfw import *

NAME = "standalone__paged_block_table_kv_radixattention__decode"
KV_BYTES = 2560 * 32768
WS_BYTES = 335544320
ML_BASE = 4 << 20
STAMP_BASE = 8 << 20
def f2u(x): return struct.unpack('<I', struct.pack('<f', x))[0]
CSC = f2u(128 ** -0.5 * math.log2(math.e))
MASKV = 0xD3800000
NEGBIG = 0xFE800000
TBL = 131072
MINS = 147456
FLAG = MINS + 64
LDS_BYTES = MINS + 128

def gen(stamps=False, ntk='nt', ntv='nt'):
    A = Asm()
    V = Regs('v', 1, 256)
    S = Regs('s', 52, 100)
    pQ, pK, pV, pBT, pCTX, pOUT, pDBG, pWS = 4, 6, 8, 10, 12, 14, 16, 18
    srdK, srdV, srdQ, srdBT, srdWS, srdOUT, srdDBG = 20, 24, 28, 32, 36, 40, 44
    sCtx = 48
    sW, sHp, sSlot, sHl, sPart, sHead = [S.one() for _ in range(6)]
    sC = S.one(); sSelLo = S.one(); sSelHi = S.one()
    sN = S.one(); sI0 = S.one(); sKb = S.one()
    sE = [S.one() for _ in range(5)]
    sU0 = S.one(); sU1 = S.one(); sZq = S.one()
    t = [S.one() for _ in range(8)]
    mB = [S.rng(2) for _ in range(4)]
    pr = [4+2*i for i in range(8)]
    sSt = S.rng(2)
    vLane, vG, vN = V.one(), V.one(), V.one()
    vKo = [V.one() for _ in range(4)]
    vVo = [V.one() for _ in range(2)]
    vKa = [V.one() for _ in range(4)]
    vSoff, vJ16, vPat, vCtx4g, vMaskV = [V.one() for _ in range(5)]
    vM, vL = V.one(), V.one()
    vStamp = V.one()
    tv = [V.one() for _ in range(8)]
    Q = V.rng(16, 4)
    O = V.rng(32, 4)
    KF = V.rng(32, 4)
    Sx = V.rng(8, 4)
    P = V.rng(4, 4)
    AT = V.rng(8, 4)
    VB = V.rng(64, 4)
    nstamp = [0]
    def stamp():
        if not stamps: return
        k = nstamp[0]; nstamp[0] += 1
        A(f"s_memrealtime {sr(sSt,2)}\ns_waitcnt lgkmcnt(0)\nv_writelane_b32 {vStamp}, {sr(sSt)}, {k}")

    A(f"""
    s_cmp_ge_u32 s2, 256
    s_cbranch_scc1 L_end
    s_load_dwordx16 s[4:19], s[0:1], 0
    v_and_b32 {vLane}, 63, v0
    v_lshrrev_b32 {tv[0]}, 6, v0
    v_lshrrev_b32 {vG}, 4, {vLane}
    v_readfirstlane_b32 {sW}, {tv[0]}
    v_and_b32 {vN}, 15, v0
    s_and_b32 {sHp}, s2, 3
    s_lshr_b32 {sSlot}, s2, 2
    s_and_b32 {sHl}, {sW}, 1
    s_lshr_b32 {sPart}, {sW}, 1
    s_lshl_b32 {sHead}, {sHp}, 1
    s_add_u32 {sHead}, {sHead}, {sHl}
    s_lshl_b32 {sKb}, {sW}, 14
    s_mov_b32 {sC}, {CSC:#x}
    s_mov_b32 {sSelLo}, 0x05040100
    s_mov_b32 {sSelHi}, 0x07060302
    s_movk_i32 {t[0]}, 0x1000
    s_movk_i32 {t[1]}, 0x2000
    s_movk_i32 {t[2]}, 0x3000
    v_lshlrev_b32 {tv[0]}, 3, v0
    v_mov_b32 {vStamp}, 0
    """)
    A(f"""
    v_lshrrev_b32 {tv[2]}, 2, {vN}
    v_lshlrev_b32 {tv[1]}, 13, {tv[2]}
    v_and_b32 {tv[3]}, 3, {vN}
    v_lshl_add_u32 {tv[1]}, {tv[3]}, 8, {tv[1]}
    v_lshl_add_u32 {tv[1]}, {vG}, 4, {tv[1]}
    s_lshl_b32 {t[3]}, {sHead}, 10
    v_add_u32 {tv[1]}, {t[3]}, {tv[1]}
    s_waitcnt lgkmcnt(0)
    s_load_dwordx4 s[48:51], s[12:13], 0
    s_mov_b32 s{srdBT}, s{pBT}
    s_mov_b32 s{srdBT+1}, s{pBT+1}
    s_movk_i32 s{srdBT+2}, 0x4000
    s_mov_b32 s{srdBT+3}, 0x20000
    """)
    TB = KF
    A(f"buffer_load_dwordx2 {vr(TB,2)}, {tv[0]}, {sr(srdBT,4)}, 0 offen")
    for b in range(1, 4):
        A(f"buffer_load_dwordx2 {vr(TB+2*b,2)}, {tv[0]}, {sr(srdBT,4)}, {t[b-1]} offen")
    A(f"""
    s_mov_b32 s{srdQ}, s{pQ}
    s_mov_b32 s{srdQ+1}, s{pQ+1}
    s_mov_b32 s{srdQ+2}, 0x8000
    s_mov_b32 s{srdQ+3}, 0x20000
    """)
    for s in range(4):
        A(f"buffer_load_dwordx4 {vr(Q+4*s,4)}, {tv[1]}, {sr(srdQ,4)}, 0 offen offset:{64*s}")
    stamp()
    for srd, p, n in ((srdK, pK, KV_BYTES), (srdV, pV, KV_BYTES), (srdWS, pWS, WS_BYTES), (srdOUT, pOUT, 32768), (srdDBG, pDBG, 256)):
        A(f"s_mov_b32 s{srd}, s{p}\ns_mov_b32 s{srd+1}, s{p+1}\ns_mov_b32 s{srd+2}, {n:#x}\ns_mov_b32 s{srd+3}, 0x20000")
    A(f"s_lshl_b32 {t[3]}, {sHead}, 8")
    for i in range(4):
        A(f"""
        v_add_u32 {tv[2]}, {4*i}, {vG}
        v_xor_b32 {tv[3]}, {tv[2]}, {vN}
        v_lshlrev_b32 {tv[3]}, 4, {tv[3]}
        v_lshl_add_u32 {vKo[i]}, {tv[2]}, 11, {tv[3]}
        v_add_u32 {vKo[i]}, {t[3]}, {vKo[i]}
        """)
        if i: A(f"v_subrev_u32 {vKo[i]}, {1024*i}, {vKo[i]}")
        A(f"""
        v_lshl_add_u32 {vKa[i]}, {vN}, 8, {tv[3]}
        v_add_u32 {vKa[i]}, {sKb}, {vKa[i]}
        """)
    A(f"""
    v_lshlrev_b32 {tv[2]}, 13, {vG}
    v_lshl_add_u32 {vVo[0]}, {vN}, 4, {tv[2]}
    v_add_u32 {vVo[0]}, {t[3]}, {vVo[0]}
    v_add_u32 {vVo[1]}, 0x1000, {vVo[0]}
    v_mov_b32 {vMaskV}, {MASKV:#x}
    v_mul_f32 {vM}, {sC}, {vMaskV}
    v_mov_b32 {vL}, 0
    """)
    for i in range(32):
        A(f"v_mov_b32 {vr(O+i)}, 0")
    A(f"s_waitcnt lgkmcnt(0)\ns_mov_b32 {sZq}, 0")
    for b in range(4):
        A(f"""
        s_cmp_lt_i32 s{sCtx+b}, 1
        s_cselect_b32 {t[4]}, {1<<b}, 0
        s_cselect_b32 s{sCtx+b}, 0x4000, s{sCtx+b}
        s_or_b32 {sZq}, {sZq}, {t[4]}
        s_min_u32 s{sCtx+b}, s{sCtx+b}, 0x4000
        """)
    A(f"""
    s_min_u32 {t[4]}, s{sCtx}, s{sCtx+1}
    s_min_u32 {t[5]}, s{sCtx+2}, s{sCtx+3}
    s_min_u32 {t[4]}, {t[4]}, {t[5]}
    s_lshr_b32 {t[4]}, {t[4]}, 4
    """)
    A(f"""
    v_lshrrev_b32 {tv[2]}, 2, {vN}
    v_mov_b32 {vCtx4g}, s{sCtx}
    v_mov_b32 {tv[3]}, s{sCtx+1}
    v_cmp_eq_u32 vcc, 1, {tv[2]}
    v_cndmask_b32 {vCtx4g}, {vCtx4g}, {tv[3]}, vcc
    v_mov_b32 {tv[3]}, s{sCtx+2}
    v_cmp_eq_u32 vcc, 2, {tv[2]}
    v_cndmask_b32 {vCtx4g}, {vCtx4g}, {tv[3]}, vcc
    v_mov_b32 {tv[3]}, s{sCtx+3}
    v_cmp_eq_u32 vcc, 3, {tv[2]}
    v_cndmask_b32 {vCtx4g}, {vCtx4g}, {tv[3]}, vcc
    v_lshlrev_b32 {tv[3]}, 2, {vG}
    v_sub_u32 {vCtx4g}, {vCtx4g}, {tv[3]}
    v_add_u32 {tv[4]}, {TBL:#x}, {tv[0]}
    s_lshl_b32 {t[5]}, {sW}, 2
    s_add_u32 {t[5]}, {t[5]}, {MINS:#x}
    v_mov_b32 {tv[5]}, {t[5]}
    v_mov_b32 {tv[6]}, {MINS:#x}
    s_waitcnt vmcnt(4)
    """)
    stamp()
    for b in range(4):
        A(f"ds_write_b64 {tv[4]}, {vr(TB+2*b,2)} offset:{4096*b}")
    for e in range(2):
        A(f"""
        v_xor_b32 {tv[2]}, {vr(TB+e)}, {vr(TB+2+e)}
        v_xor_b32 {tv[3]}, {vr(TB+e)}, {vr(TB+4+e)}
        v_xor_b32 {tv[7]}, {vr(TB+e)}, {vr(TB+6+e)}
        v_or3_b32 {tv[2]}, {tv[2]}, {tv[3]}, {tv[7]}
        v_cmp_ne_u32 {sr(pr[e],2)}, 0, {tv[2]}
        """)
    A(f"""
    s_ff1_i32_b64 {t[5]}, {sr(pr[0],2)}
    s_ff1_i32_b64 {t[6]}, {sr(pr[1],2)}
    s_lshl_b32 {t[5]}, {t[5]}, 1
    s_lshl_b32 {t[6]}, {t[6]}, 1
    s_or_b32 {t[6]}, {t[6]}, 1
    s_min_u32 {t[5]}, {t[5]}, {t[6]}
    s_lshl_b32 {t[6]}, {sW}, 7
    s_cmp_lt_u32 {t[5]}, 128
    s_cselect_b32 {t[6]}, {t[6]}, 0x400
    s_cselect_b32 {t[5]}, {t[5]}, 0
    s_add_u32 {t[5]}, {t[5]}, {t[6]}
    v_mov_b32 {tv[2]}, {t[5]}
    ds_write_b32 {tv[5]}, {tv[2]}
    s_waitcnt lgkmcnt(0)
    s_barrier
    ds_read_b128 {vr(KF+8,4)}, {tv[6]}
    ds_read_b128 {vr(KF+12,4)}, {tv[6]} offset:16
    """)
    for b in range(4):
        A(f"s_add_u32 {sE[b+1]}, s{sCtx+b}, 15\ns_lshr_b32 {sE[b+1]}, {sE[b+1]}, 4")
    A(f"""
    v_lshlrev_b32 {tv[3]}, 2, {vLane}
    v_add_u32 {tv[3]}, {sPart}, {tv[3]}
    s_waitcnt lgkmcnt(0)
    v_min3_u32 {tv[2]}, {vr(KF+8)}, {vr(KF+9)}, {vr(KF+10)}
    v_min3_u32 {tv[7]}, {vr(KF+11)}, {vr(KF+12)}, {vr(KF+13)}
    v_min3_u32 {tv[2]}, {tv[2]}, {vr(KF+14)}, {vr(KF+15)}
    v_min_u32 {tv[2]}, {tv[2]}, {tv[7]}
    v_readfirstlane_b32 {sE[0]}, {tv[2]}
    s_min_u32 {sE[0]}, {sE[0]}, {t[4]}             ; Ps
    """)
    for b in range(4):
        A(f"s_sub_u32 {sE[b+1]}, {sE[b+1]}, {sE[0]}\ns_add_u32 {sE[b+1]}, {sE[b+1]}, {sE[b]}")
    A(f"""
    s_mul_i32 {sU0}, {sSlot}, {sE[4]}
    s_add_u32 {sU1}, {sU0}, {sE[4]}
    s_lshr_b32 {sU0}, {sU0}, 6
    s_lshr_b32 {sU1}, {sU1}, 6
    v_add_u32 {tv[3]}, {sU0}, {tv[3]}              ; u
    """)
    for b in range(1, 4):
        A(f"s_sub_u32 {t[b-1]}, {sE[0]}, {sE[b]}\ns_add_u32 {t[b-1]}, {t[b-1]}, {1024*b}")
    A(f"""
    v_mov_b32 {tv[2]}, 0
    v_mov_b32 {vPat}, 0xffff
    v_cmp_gt_u32 {sr(pr[0],2)}, {sE[0]}, {tv[3]}
    v_cmp_gt_u32 {sr(pr[1],2)}, {sE[1]}, {tv[3]}
    v_cmp_gt_u32 {sr(pr[2],2)}, {sE[2]}, {tv[3]}
    v_cmp_gt_u32 {sr(pr[3],2)}, {sE[3]}, {tv[3]}
    v_cmp_gt_u32 {sr(pr[4],2)}, {sU1}, {tv[3]}
    v_mov_b32 {tv[4]}, {t[0]}
    v_mov_b32 {tv[5]}, {t[1]}
    v_mov_b32 {tv[6]}, {t[2]}
    v_cndmask_b32 {tv[2]}, {tv[4]}, {tv[2]}, {sr(pr[1],2)}
    v_cndmask_b32 {tv[2]}, {tv[5]}, {tv[2]}, {sr(pr[2],2)}
    v_cndmask_b32 {tv[2]}, {tv[6]}, {tv[2]}, {sr(pr[3],2)}
    v_add_u32 {tv[2]}, {tv[2]}, {tv[3]}
    v_cndmask_b32 {tv[2]}, 0, {tv[2]}, {sr(pr[4],2)}
    v_lshlrev_b32 {tv[4]}, 2, {tv[2]}
    v_add_u32 {tv[4]}, {TBL:#x}, {tv[4]}
    ds_read_b32 {vSoff}, {tv[4]}
    v_cndmask_b32 {vPat}, 15, {vPat}, {sr(pr[0],2)}
    v_mov_b32 {tv[4]}, 0xf0
    v_mov_b32 {tv[5]}, 0xf00
    v_mov_b32 {tv[6]}, 0xf000
    v_cndmask_b32 {vPat}, {tv[4]}, {vPat}, {sr(pr[1],2)}
    v_cndmask_b32 {vPat}, {tv[5]}, {vPat}, {sr(pr[2],2)}
    v_cndmask_b32 {vPat}, {tv[6]}, {vPat}, {sr(pr[3],2)}
    v_cndmask_b32 {vPat}, 0, {vPat}, {sr(pr[4],2)}
    v_and_b32 {vJ16}, 0x3ff, {tv[2]}
    v_lshlrev_b32 {vJ16}, 4, {vJ16}
    s_bcnt1_i32_b64 {sN}, {sr(pr[4],2)}
    s_waitcnt lgkmcnt(0)
    v_min_u32 {vSoff}, 0x9ff, {vSoff}
    v_lshlrev_b32 {vSoff}, 15, {vSoff}
    """)
    def issueK(par, offs, nrs):
        for x in range(2):
            A(f"s_add_u32 m0, {sKb}, {par*8192 + x*4096}\ns_mov_b32 s{srdK+2}, {nrs[x]}")
            for i in range(4):
                A(f"buffer_load_dwordx4 {vKo[i]}, {sr(srdK,4)}, {offs[x]} offen offset:{1024*i} {ntk} lds")
    def issueV(par, offs, nrs):
        for x in range(2):
            A(f"s_mov_b32 s{srdV+2}, {nrs[x]}")
            for j in range(4):
                A(f"buffer_load_dwordx4 {vr(VB+par*32+x*16+j*4,4)}, {vVo[j>>1]}, {sr(srdV,4)}, {offs[x]} offen offset:{2048*(j&1)} {ntv}")
    for k in range(4):
        A(f"v_readlane_b32 {t[k]}, {vSoff}, {k}")
    for k in range(4):
        A(f"s_cmp_gt_u32 {sN}, {k}\ns_cselect_b32 {t[4+k]}, {KV_BYTES:#x}, 0")
    issueK(0, t[0:2], t[4:6]); issueV(0, t[0:2], t[4:6])
    issueK(1, t[2:4], t[6:8]); issueV(1, t[2:4], t[6:8])
    stamp()
    A(f"""
    v_mul_u32_u24 {tv[2]}, {sE[4]}, {vLane}
    v_add_u32 {tv[3]}, {sE[4]}, {tv[2]}
    v_lshrrev_b32 {tv[2]}, 6, {tv[2]}              ; st
    v_lshrrev_b32 {tv[3]}, 6, {tv[3]}              ; en
    v_cmp_lt_u32 {sr(pr[0],2)}, {tv[2]}, {tv[3]}   ; nonempty
    v_cmp_gt_u32 {sr(pr[1],2)}, {sE[0]}, {tv[2]}
    """)
    for b in range(4):
        A(f"""
        v_cmp_gt_u32 {sr(pr[2],2)}, {sE[b+1]}, {tv[2]}
        v_cmp_lt_u32 {sr(pr[3],2)}, {sE[b]}, {tv[3]}
        s_and_b64 {sr(pr[2],2)}, {sr(pr[2],2)}, {sr(pr[3],2)}
        s_or_b64 {sr(pr[2],2)}, {sr(pr[2],2)}, {sr(pr[1],2)}
        s_and_b64 {sr(mB[b],2)}, {sr(pr[2],2)}, {sr(pr[0],2)}
        """)
    A(f"""
    s_waitcnt vmcnt(32)
    s_cmp_eq_u32 {sZq}, 0
    s_cbranch_scc1 L_noz
    v_lshrrev_b32 {tv[2]}, 2, {vN}
    v_lshrrev_b32 {tv[2]}, {tv[2]}, {sZq}
    """.replace(f"v_lshrrev_b32 {tv[2]}, {tv[2]}, {sZq}", f"v_mov_b32 {tv[3]}, {sZq}\nv_lshrrev_b32 {tv[2]}, {tv[2]}, {tv[3]}"))
    A(f"v_and_b32 {tv[2]}, 1, {tv[2]}\nv_cmp_eq_u32 vcc, 0, {tv[2]}")
    for i in range(16):
        A(f"v_cndmask_b32 {vr(Q+i)}, 0, {vr(Q+i)}, vcc")
    A("s_nop 1\nL_noz:")
    A(f"""
    s_mov_b32 {sI0}, 0
    s_cmp_eq_u32 {sN}, 0
    s_cbranch_scc1 L_loopdone
    L_loop:
    """)
    sOffA, sOffB, sNrA, sNrB, sJ0, sJ1, sP0, sP1 = t
    first = [True]
    def tile(par):
        S0, S1 = Sx, Sx + 4
        A(f"""
        s_add_u32 {sNrA}, {sI0}, 4
        s_add_u32 {sNrB}, {sI0}, 5
        s_add_u32 {sP1}, {sI0}, 1
        v_readlane_b32 {sOffA}, {vSoff}, {sNrA}
        v_readlane_b32 {sOffB}, {vSoff}, {sNrB}
        v_readlane_b32 {sJ0}, {vJ16}, {sI0}
        v_readlane_b32 {sJ1}, {vJ16}, {sP1}
        v_readlane_b32 {sP0}, {vPat}, {sI0}
        v_readlane_b32 {sP1}, {vPat}, {sP1}
        s_cmp_lt_u32 {sNrA}, {sN}
        s_cselect_b32 {sNrA}, {KV_BYTES:#x}, 0
        s_cmp_lt_u32 {sNrB}, {sN}
        s_cselect_b32 {sNrB}, {KV_BYTES:#x}, 0
        s_mul_i32 {sr(pr[0])}, {sP0}, 0x10001
        s_mul_i32 {sr(pr[1])}, {sP1}, 0x10001
        s_mov_b32 {sr(pr[0]+1)}, {sr(pr[0])}
        s_mov_b32 {sr(pr[1]+1)}, {sr(pr[1])}
        v_subrev_u32 {tv[0]}, {sJ0}, {vCtx4g}
        v_subrev_u32 {tv[1]}, {sJ1}, {vCtx4g}
        v_cndmask_b32 {tv[0]}, 0, {tv[0]}, {sr(pr[0],2)}
        v_cndmask_b32 {tv[1]}, 0, {tv[1]}, {sr(pr[1],2)}
        s_waitcnt vmcnt(24)
        """)
        if first[0]:
            stamp(); first[0] = False
        for x in range(2):
            for s in range(4):
                A(f"ds_read_b128 {vr(KF+x*16+s*4,4)}, {vKa[s]} offset:{par*8192+x*4096}")
        for x in range(2):
            for r in range(4):
                A(f"v_cmp_lt_i32 {sr(pr[x*4+r],2)}, {r}, {tv[x]}")
        for x in range(2):
            A(f"s_waitcnt lgkmcnt({4*(1-x)})")
            for s in range(4):
                c = '0' if s == 0 else vr(Sx+4*x, 4)
                A(f"v_mfma_f32_16x16x32_bf16 {vr(Sx+4*x,4)}, {vr(KF+x*16+s*4,4)}, {vr(Q+4*s,4)}, {c}")
        issueK(par, (sOffA, sOffB), (sNrA, sNrB))
        for x in range(2):
            for r in range(4):
                A(f"v_cndmask_b32 {vr(Sx+4*x+r)}, {vMaskV}, {vr(Sx+4*x+r)}, {sr(pr[x*4+r],2)}")
        A(f"""
        v_max3_f32 {tv[0]}, {vr(S0)}, {vr(S0+1)}, {vr(S0+2)}
        v_max3_f32 {tv[1]}, {vr(S0+3)}, {vr(S1)}, {vr(S1+1)}
        v_max3_f32 {tv[0]}, {tv[0]}, {vr(S1+2)}, {vr(S1+3)}
        v_max_f32 {tv[0]}, {tv[0]}, {tv[1]}
        v_mov_b32 {tv[1]}, {tv[0]}
        v_permlane32_swap_b32 {tv[0]}, {tv[1]}
        v_max_f32 {tv[0]}, {tv[0]}, {tv[1]}
        v_mov_b32 {tv[1]}, {tv[0]}
        v_permlane16_swap_b32 {tv[0]}, {tv[1]}
        v_max_f32 {tv[0]}, {tv[0]}, {tv[1]}
        v_mul_f32 {tv[0]}, {sC}, {tv[0]}
        v_max_f32 {tv[0]}, {tv[0]}, {vM}            ; mnew
        v_sub_f32 {tv[1]}, {vM}, {tv[0]}
        v_mov_b32 {vM}, {tv[0]}
        v_exp_f32 {tv[1]}, {tv[1]}                  ; alpha
        """)
        for i in range(8):
            A(f"v_fma_f32 {vr(Sx+i)}, {vr(Sx+i)}, {sC}, -{tv[0]}")
        for i in range(8):
            A(f"v_exp_f32 {vr(Sx+i)}, {vr(Sx+i)}")
        A(f"v_cmp_neq_f32 vcc, 1.0, {tv[1]}")
        A(f"""
        v_add_f32 {tv[2]}, {vr(Sx)}, {vr(Sx+1)}
        v_add_f32 {tv[3]}, {vr(Sx+2)}, {vr(Sx+3)}
        v_add_f32 {tv[4]}, {vr(Sx+4)}, {vr(Sx+5)}
        v_add_f32 {tv[5]}, {vr(Sx+6)}, {vr(Sx+7)}
        v_add_f32 {tv[2]}, {tv[2]}, {tv[3]}
        v_add_f32 {tv[4]}, {tv[4]}, {tv[5]}
        v_add_f32 {tv[2]}, {tv[2]}, {tv[4]}
        v_fma_f32 {vL}, {vL}, {tv[1]}, {tv[2]}
        """)
        for i in range(4):
            A(f"v_cvt_pk_bf16_f32 {vr(P+i)}, {vr(Sx+2*i)}, {vr(Sx+2*i+1)}")
        A(f"s_cbranch_vccz L_nors{par}")
        for i in range(32):
            A(f"v_mul_f32 {vr(O+i)}, {tv[1]}, {vr(O+i)}")
        A(f"L_nors{par}:\ns_waitcnt vmcnt(24)")
        vb = VB + par * 32
        def perms(d):
            sel = sSelHi if d & 1 else sSelLo
            m = d >> 1
            for jj in range(4):
                x, j0 = jj >> 1, (jj & 1) * 2
                lo = vb + x*16 + j0*4 + m
                hi = vb + x*16 + (j0+1)*4 + m
                A(f"v_perm_b32 {vr(AT+(d&1)*4+jj)}, {vr(hi)}, {vr(lo)}, {sel}")
        perms(0)
        for d in range(8):
            if d < 7: perms(d+1)
            A(f"v_mfma_f32_16x16x32_bf16 {vr(O+4*d,4)}, {vr(AT+(d&1)*4,4)}, {vr(P,4)}, {vr(O+4*d,4)}")
        issueV(par, (sOffA, sOffB), (sNrA, sNrB))
        A(f"s_add_u32 {sI0}, {sI0}, 2\ns_cmp_lt_u32 {sI0}, {sN}")
    tile(0)
    A("s_cbranch_scc0 L_loopdone")
    tile(1)
    A("s_cbranch_scc1 L_loop")
    A("L_loopdone:")
    stamp()
    A(f"""
    v_mov_b32 {tv[1]}, {vL}
    v_lshlrev_b32 {tv[2]}, 4, {vLane}
    v_permlane32_swap_b32 {vL}, {tv[1]}
    v_add_f32 {vL}, {vL}, {tv[1]}
    v_add_u32 {tv[3]}, {sKb}, {tv[2]}
    v_mov_b32 {tv[1]}, {vL}
    v_lshlrev_b32 {tv[4]}, 3, {vLane}
    v_add_u32 {tv[4]}, {sKb}, {tv[4]}
    v_permlane16_swap_b32 {vL}, {tv[1]}
    v_add_f32 {vr(P+1)}, {vL}, {tv[1]}
    v_mov_b32 {vr(P)}, {vM}
    s_waitcnt vmcnt(0)
    """)
    for d in range(8):
        A(f"ds_write_b128 {tv[3]}, {vr(O+4*d,4)} offset:{1024*d}")
    A(f"ds_write_b64 {tv[4]}, {vr(P,2)} offset:8192")
    A(f"""
    s_lshl_b32 {t[0]}, {sHl}, 14
    s_lshl_b32 {t[1]}, {sPart}, 11
    s_add_u32 {t[1]}, {t[1]}, {t[0]}
    v_add_u32 {tv[2]}, {t[1]}, {tv[2]}
    v_add_u32 {tv[3]}, 0x10000, {tv[2]}
    v_lshlrev_b32 {tv[4]}, 3, {vLane}
    v_add_u32 {tv[4]}, {t[0]}, {tv[4]}
    v_add_u32 {tv[5]}, 0x10000, {tv[4]}
    s_waitcnt lgkmcnt(0)
    s_barrier
    """)
    ML = KF
    R = VB
    for p in range(4):
        A(f"ds_read_b64 {vr(ML+2*p,2)}, {tv[4+(p>>1)]} offset:{8192+(p&1)*32768}")
    for p in range(4):
        for dd in range(2):
            A(f"ds_read_b128 {vr(R+p*8+dd*4,4)}, {tv[2+(p>>1)]} offset:{(p&1)*32768+dd*1024}")
    A(f"""
    v_lshrrev_b32 {tv[0]}, 2, {vN}                 ; b
    v_and_b32 {tv[1]}, 3, {vN}                     ; qh
    v_lshlrev_b32 {tv[6]}, 12, {tv[0]}
    v_lshl_add_u32 {tv[6]}, {tv[1]}, 9, {tv[6]}
    v_lshl_add_u32 {tv[6]}, {vG}, 4, {tv[6]}       ; b*4096 + qh*512 + g*16
    s_lshl_b32 {t[0]}, {sHp}, 6
    s_add_u32 {t[0]}, {t[0]}, {sSlot}
    s_lshl_b32 {t[0]}, {t[0]}, 14
    s_lshl_b32 {t[1]}, {sHl}, 11
    s_add_u32 {t[0]}, {t[0]}, {t[1]}
    s_lshl_b32 {t[1]}, {sPart}, 7
    s_add_u32 {t[0]}, {t[0]}, {t[1]}
    v_lshlrev_b32 {tv[7]}, 12, {tv[0]}
    v_lshl_add_u32 {tv[7]}, {tv[1]}, 9, {tv[7]}
    s_lshl_b32 {t[1]}, {sHp}, 14
    s_lshl_b32 {t[2]}, {sHl}, 11
    s_add_u32 {t[1]}, {t[1]}, {t[2]}
    s_lshl_b32 {t[2]}, {sSlot}, 3
    s_add_u32 {t[1]}, {t[1]}, {t[2]}
    s_add_u32 {t[1]}, {t[1]}, {ML_BASE:#x}
    s_mov_b32 {t[2]}, 0
    s_mov_b32 {t[3]}, 0
    """)
    for b in range(4):
        A(f"""
        s_bitcmp1_b64 {sr(mB[b],2)}, {sSlot}
        s_cselect_b32 {t[4]}, {1<<b}, 0
        s_cselect_b32 {t[5]}, {0xf<<(4*b):#x}, 0
        s_or_b32 {t[2]}, {t[2]}, {t[4]}
        s_or_b32 {t[3]}, {t[3]}, {t[5]}
        """)
    A(f"""
    s_mul_i32 {sr(pr[0])}, {t[3]}, 0x10001
    s_mov_b32 {sr(pr[0]+1)}, {sr(pr[0])}
    s_waitcnt lgkmcnt(8)
    v_max3_f32 {tv[0]}, {vr(ML)}, {vr(ML+2)}, {vr(ML+4)}
    v_max_f32 {vr(P)}, {tv[0]}, {vr(ML+6)}
    """)
    for p in range(4):
        A(f"v_sub_f32 {vr(ML+2*p)}, {vr(ML+2*p)}, {vr(P)}")
    for p in range(4):
        A(f"v_exp_f32 {vr(ML+2*p)}, {vr(ML+2*p)}")
    A(f"v_mul_f32 {vr(P+1)}, {vr(ML)}, {vr(ML+1)}")
    for p in range(1, 4):
        A(f"v_fmac_f32 {vr(P+1)}, {vr(ML+2*p)}, {vr(ML+2*p+1)}")
    A("s_waitcnt lgkmcnt(0)")
    for i in range(8):
        A(f"v_mul_f32 {vr(O+i)}, {vr(ML)}, {vr(R+i)}")
    for p in range(1, 4):
        for i in range(8):
            A(f"v_fmac_f32 {vr(O+i)}, {vr(ML+2*p)}, {vr(R+p*8+i)}")
    A(f"""
    s_cmp_eq_u32 {t[2]}, 0
    s_cbranch_scc1 L_nostore
    s_mov_b64 exec, {sr(pr[0],2)}
    buffer_store_dwordx4 {vr(O,4)}, {tv[6]}, {sr(srdWS,4)}, {t[0]} offen sc1
    buffer_store_dwordx4 {vr(O+4,4)}, {tv[6]}, {sr(srdWS,4)}, {t[0]} offen offset:64 sc1
    s_cmp_lg_u32 {sPart}, 0
    s_cbranch_scc1 L_noml
    s_mov_b32 exec_lo, {t[3]}
    s_mov_b32 exec_hi, 0
    buffer_store_dwordx2 {vr(P,2)}, {tv[7]}, {sr(srdWS,4)}, {t[1]} offen sc1
    L_noml:
    s_mov_b64 exec, -1
    L_nostore:
    """)
    stamp()
    A(f"""
    v_mov_b32 {tv[5]}, {FLAG:#x}
    s_waitcnt vmcnt(0)
    s_barrier
    s_cmp_lg_u32 {sW}, 0
    s_cbranch_scc1 L_waitflag
    v_mov_b32 {tv[0]}, 0
    s_cmp_eq_u32 {t[2]}, 0
    s_cbranch_scc1 L_putflag
    """)
    for b in range(4):
        A(f"s_bcnt1_i32_b64 {t[4]}, {sr(mB[b],2)}\nv_writelane_b32 {tv[1]}, {t[4]}, {b}")
    A(f"""
    s_lshl_b32 {t[4]}, {sHp}, 4
    v_lshlrev_b32 {tv[2]}, 2, {vLane}
    v_mov_b32 {tv[3]}, 1
    s_mov_b32 exec_lo, {t[2]}
    s_mov_b32 exec_hi, 0
    buffer_atomic_add {tv[3]}, {tv[2]}, {sr(srdDBG,4)}, {t[4]} offen offset:64 sc0
    s_waitcnt vmcnt(0)
    v_add_u32 {tv[3]}, 1, {tv[3]}
    v_cmp_eq_u32 vcc, {tv[3]}, {tv[1]}
    s_mov_b64 exec, -1
    v_mov_b32 {tv[0]}, vcc_lo
    L_putflag:
    ds_write_b32 {tv[5]}, {tv[0]}
    s_waitcnt lgkmcnt(0)
    L_waitflag:
    s_barrier
    ds_read_b32 {tv[0]}, {tv[5]}
    v_lshlrev_b32 {tv[6]}, 3, {vLane}
    v_lshrrev_b32 {tv[1]}, 1, {vLane}
    v_and_b32 {tv[1]}, 3, {tv[1]}
    v_lshlrev_b32 {tv[1]}, 5, {tv[1]}
    v_and_b32 {tv[2]}, 1, {vLane}
    v_lshl_add_u32 {tv[1]}, {tv[2]}, 4, {tv[1]}
    v_lshrrev_b32 {tv[2]}, 3, {vLane}
    v_add_u32 {tv[1]}, {tv[1]}, {tv[2]}
    v_lshlrev_b32 {tv[7]}, 1, {tv[1]}
    s_waitcnt lgkmcnt(0)
    v_readfirstlane_b32 {sN}, {tv[0]}
    """)
    stamp()
    sLast, sB = sN, sI0
    mA, mC, mS = pr[0], pr[1], pr[2]
    RR = KF + 0
    RR = VB
    A(f"""
    L_comb:
    s_cmp_eq_u32 {sLast}, 0
    s_cbranch_scc1 L_fin
    s_ff1_i32_b32 {sB}, {sLast}
    s_bitset0_b32 {sLast}, {sB}
    s_cmp_eq_u32 {sB}, 0
    s_cselect_b64 {sr(mS,2)}, {sr(mB[0],2)}, {sr(mB[1],2)}
    s_cmp_eq_u32 {sB}, 2
    s_cselect_b64 {sr(mS,2)}, {sr(mB[2],2)}, {sr(mS,2)}
    s_cmp_eq_u32 {sB}, 3
    s_cselect_b64 {sr(mS,2)}, {sr(mB[3],2)}, {sr(mS,2)}
    s_mov_b64 {sr(mA,2)}, {sr(mS,2)}
    s_mov_b64 {sr(mC,2)}, {sr(mS,2)}
    s_lshl_b32 {t[0]}, {sB}, 3
    s_add_u32 {t[0]}, {t[0]}, {sW}
    s_lshl_b32 {t[0]}, {t[0]}, 9
    s_lshl_b32 {t[1]}, {sHp}, 14
    s_add_u32 {t[1]}, {t[1]}, {t[0]}
    s_add_u32 {t[1]}, {t[1]}, {ML_BASE:#x}
    s_lshl_b32 {t[2]}, {sHp}, 20
    s_add_u32 {t[2]}, {t[2]}, {t[0]}
    buffer_load_dwordx2 {vr(KF,2)}, {tv[6]}, {sr(srdWS,4)}, {t[1]} offen sc1
    v_mov_b32 {vr(O)}, 0
    v_mov_b32 {vr(O+1)}, 0
    L_pass:
    """)
    for k in range(32):
        A(f"""
        s_cmp_eq_u64 {sr(mA,2)}, 0
        s_cbranch_scc1 L_issued
        s_ff1_i32_b64 {t[3]}, {sr(mA,2)}
        s_bitset0_b64 {sr(mA,2)}, {t[3]}
        s_lshl_b32 {t[3]}, {t[3]}, 14
        s_add_u32 {t[3]}, {t[3]}, {t[2]}
        buffer_load_dwordx2 {vr(RR+2*k,2)}, {tv[6]}, {sr(srdWS,4)}, {t[3]} offen sc1
        """)
    A(f"""
    L_issued:
    v_mov_b32 {tv[0]}, {NEGBIG:#x}
    s_waitcnt vmcnt(0)
    v_cndmask_b32 {tv[0]}, {tv[0]}, {vr(KF)}, {sr(mS,2)}
    v_cndmask_b32 {tv[1]}, 0, {vr(KF+1)}, {sr(mS,2)}
    v_mov_b32 {tv[2]}, {tv[0]}
    """)
    for ror in (8, 4, 2, 1):
        A(f"v_max_f32_dpp {tv[2]}, {tv[2]}, {tv[2]} row_ror:{ror} row_mask:0xf bank_mask:0xf")
    for sw in (16, 32):
        A(f"v_mov_b32 {tv[3]}, {tv[2]}\nv_permlane{sw}_swap_b32 {tv[2]}, {tv[3]}\nv_max_f32 {tv[2]}, {tv[2]}, {tv[3]}")
    A(f"""
    v_sub_f32 {tv[0]}, {tv[0]}, {tv[2]}
    v_exp_f32 {tv[0]}, {tv[0]}
    v_mul_f32 {tv[1]}, {tv[1]}, {tv[0]}
    """)
    for ror in (8, 4, 2, 1):
        A(f"v_add_f32_dpp {tv[1]}, {tv[1]}, {tv[1]} row_ror:{ror} row_mask:0xf bank_mask:0xf")
    for sw in (16, 32):
        A(f"v_mov_b32 {tv[3]}, {tv[1]}\nv_permlane{sw}_swap_b32 {tv[1]}, {tv[3]}\nv_add_f32 {tv[1]}, {tv[1]}, {tv[3]}")
    for k in range(32):
        A(f"""
        s_cmp_eq_u64 {sr(mC,2)}, {sr(mA,2)}
        s_cbranch_scc1 L_accd
        s_ff1_i32_b64 {t[3]}, {sr(mC,2)}
        s_bitset0_b64 {sr(mC,2)}, {t[3]}
        v_readlane_b32 {t[4]}, {tv[0]}, {t[3]}
        v_fmac_f32 {vr(O)}, {t[4]}, {vr(RR+2*k)}
        v_fmac_f32 {vr(O+1)}, {t[4]}, {vr(RR+2*k+1)}
        """)
    A(f"""
    L_accd:
    s_cmp_lg_u64 {sr(mA,2)}, 0
    s_cbranch_scc1 L_pass
    v_rcp_f32 {tv[1]}, {tv[1]}
    s_lshl_b32 {t[0]}, {sB}, 5
    s_lshl_b32 {t[1]}, {sHp}, 3
    s_add_u32 {t[0]}, {t[0]}, {t[1]}
    s_add_u32 {t[0]}, {t[0]}, {sW}
    s_lshl_b32 {t[0]}, {t[0]}, 8
    v_mul_f32 {vr(O)}, {vr(O)}, {tv[1]}
    v_mul_f32 {vr(O+1)}, {vr(O+1)}, {tv[1]}
    v_cvt_pk_bf16_f32 {tv[2]}, {vr(O)}, {vr(O+1)}
    buffer_store_short {tv[2]}, {tv[7]}, {sr(srdOUT,4)}, {t[0]} offen
    buffer_store_short_d16_hi {tv[2]}, {tv[7]}, {sr(srdOUT,4)}, {t[0]} offen offset:16
    s_nop 1
    s_branch L_comb
    L_fin:
    """)
    if stamps:
        A("s_waitcnt vmcnt(0)")
        stamp()
        A(f"""
        v_lshlrev_b32 {tv[0]}, 2, {vLane}
        v_not_b32 {tv[1]}, {vStamp}
        s_mov_b64 exec, 0xff
        buffer_atomic_umax {vStamp}, {tv[0]}, {sr(srdDBG,4)}, 0 offen
        buffer_atomic_umax {tv[1]}, {tv[0]}, {sr(srdDBG,4)}, 0 offen offset:32
        """)
    A("L_end:\ns_endpgm")
    body, nn = A.finalize()
    nv = V.hi
    hdr = open('cdna_kernels/%s.s.ref' % NAME).read().split('; Override')[0]
    out = hdr + f"""; Generated by gen/gen1.py (hand-written generator). auto-nops: {nn}
; @launch grid=(256,1,1) block=(512,1,1) lds={LDS_BYTES}
.amdgcn_target "amdgcn-amd-amdhsa--gfx950"
.text
.globl {NAME}_kernel
.p2align 8
.type {NAME}_kernel,@function
{NAME}_kernel:
{body}.section .rodata,"a"
.p2align 6
.amdhsa_kernel {NAME}_kernel
  .amdhsa_next_free_vgpr {nv}
  .amdhsa_next_free_sgpr 102
  .amdhsa_accum_offset {(nv+3)//4*4}
  .amdhsa_group_segment_fixed_size 0
  .amdhsa_kernarg_size 64
  .amdhsa_user_sgpr_count 2
  .amdhsa_user_sgpr_kernarg_segment_ptr 1
  .amdhsa_system_sgpr_workgroup_id_x 1
.end_amdhsa_kernel
"""
    return out

if __name__ == '__main__':
    import argparse
    ap = argparse.ArgumentParser()
    ap.add_argument('-o', default='cdna_kernels/%s.s' % NAME)
    ap.add_argument('--stamps', action='store_true')
    a = ap.parse_args()
    open(a.o, 'w').write(gen(stamps=a.stamps))
    print('wrote', a.o)
```
